```python
import torch

def _softmax(x, axis=-1):
    return torch.softmax(x, dim=axis)
def _gelu(x):
    return torch.nn.functional.gelu(x, approximate="tanh")
def _silu(x):
    return torch.nn.functional.silu(x)
def _sigmoid(x):
    return torch.sigmoid(x)
def _layernorm(x, axis=-1, eps=1e-5):
    m = x.mean(dim=axis, keepdim=True)
    v = x.var(dim=axis, keepdim=True, unbiased=False)
    return (x - m) / torch.sqrt(v + eps)
def _scatter_add(tgt, idx, src, axis=0):
    return tgt.clone().index_add_(axis, idx, src)
def _segment_sum(src, seg, n):
    out = torch.zeros((n,) + src.shape[1:], dtype=src.dtype)
    return out.index_add_(0, seg, src)
def _pad(x, pw):
    flat = tuple(v for pair in reversed(pw) for v in pair)
    return torch.nn.functional.pad(x, flat)

kernel_name = 'gated_mix__ssm_conv_s5__softmax_full_mha__prompt'

def setup_inputs():

    _w = (lambda a: (lambda t: t.to(torch.bfloat16) if t.is_floating_point() else t)(torch.as_tensor(a)))
    def _A_setup():
        B, S, D = 1, 2048, 512
        P = D
        Lambda_re = -0.5 * (lambda _x: torch.exp(torch.as_tensor(_x)))((lambda *s: torch.randn(*s, dtype=torch.bfloat16) * 0.4)(P))
        Lambda_im = (lambda *s: torch.randn(*s, dtype=torch.bfloat16) * 0.8)(P) * 1.0
        B_re = (lambda *s: torch.randn(*s, dtype=torch.bfloat16) * 0.8)(P, D) * (D ** -0.5)
        B_im = (lambda *s: torch.randn(*s, dtype=torch.bfloat16) * 0.8)(P, D) * (D ** -0.5)
        C_re = (lambda *s: torch.randn(*s, dtype=torch.bfloat16) * 0.8)(D, P) * (P ** -0.5)
        C_im = (lambda *s: torch.randn(*s, dtype=torch.bfloat16) * 0.8)(D, P) * (P ** -0.5)
        log_dt = (lambda *s: torch.randn(*s, dtype=torch.bfloat16) * 0.4)(P) * 0.3 - 2.0
        Dskip = (lambda *s: torch.randn(*s, dtype=torch.bfloat16) * 0.1)(D)
        return {
            "x": _w((lambda *s: torch.randn(*s, dtype=torch.bfloat16) * 0.05)(B, S, D)),
            "Lambda_re": _w(Lambda_re),
            "Lambda_im": _w(Lambda_im),
            "B_re": _w(B_re),
            "B_im": _w(B_im),
            "C_re": _w(C_re),
            "C_im": _w(C_im),
            "log_dt": _w(log_dt),
            "Dskip": _w(Dskip),
        }
    _A_in = _A_setup()

    def _B_setup():
        B, S, D = 1, 2048, 512
        return {
            "x": _w((lambda *s: torch.randn(*s, dtype=torch.bfloat16) * 0.05)(B, S, D)),
            "wqkv": _w((lambda *s: torch.randn(*s, dtype=torch.bfloat16) * 0.8)(D, 3 * D)),
            "wo": _w((lambda *s: torch.randn(*s, dtype=torch.bfloat16) * 0.05)(D, D)),
        }
    _B_in = _B_setup()

    return {
        "A_x": _A_in["x"],
        "A_Lambda_re": _A_in["Lambda_re"],
        "A_Lambda_im": _A_in["Lambda_im"],
        "A_B_re": _A_in["B_re"],
        "A_B_im": _A_in["B_im"],
        "A_C_re": _A_in["C_re"],
        "A_C_im": _A_in["C_im"],
        "A_log_dt": _A_in["log_dt"],
        "A_Dskip": _A_in["Dskip"],
        "B_x": _B_in["x"],
        "B_wqkv": _B_in["wqkv"],
        "B_wo": _B_in["wo"],
        "gate_w": _w((lambda *s: torch.randn(*s, dtype=torch.bfloat16) * 0.05)(512) * 16.0),
    }

def reference(A_x, A_Lambda_re, A_Lambda_im, A_B_re, A_B_im, A_C_re, A_C_im, A_log_dt, A_Dskip, B_x, B_wqkv, B_wo, gate_w):
    def _A_ref(x, Lambda_re, Lambda_im, B_re, B_im, C_re, C_im, log_dt, Dskip):
        Bsz, L, H = x.shape
        Lam = Lambda_re + 1j * Lambda_im
        Bmat = B_re + 1j * B_im
        Cmat = C_re + 1j * C_im
        dt = torch.exp(log_dt)
        Lam_bar = torch.exp(dt * Lam)
        B_bar = ((Lam_bar - 1.0) / Lam)[:, None] * Bmat
        Bu = torch.einsum("bld,pd->blp", x + 0j, B_bar)
        h = torch.zeros_like(Bu[:, 0, :])
        hs = []
        for t in range(L):
            h = Lam_bar[None, :] * h + Bu[:, t, :]
            hs.append(h)
        hseq = torch.stack(hs, 1)
        y = 2.0 * torch.einsum("blp,dp->bld", hseq, Cmat).real + x * Dskip[None, None, :]
        return y

    def _B_ref(x, wqkv, wo):
        B, S, D = x.shape
        H = 32; Dh = D // H
        qkv = (lambda x, *d: x.permute(*d))((x @ wqkv).reshape(B, S, 3, H, Dh), 2, 0, 3, 1, 4)
        q, k, v = qkv[0], qkv[1], qkv[2]
        scale = Dh ** -0.5
        scores = torch.einsum("bhqd,bhkd->bhqk", q, k) * scale
        p = _softmax(scores, axis=-1)
        o = torch.einsum("bhqk,bhkd->bhqd", p, v)
        return (lambda x, *d: x.permute(*d))(o, 0, 2, 1, 3).reshape(B, S, D) @ wo

    x = A_x
    g = _sigmoid((x * gate_w).sum(-1, keepdims=True))
    a = _A_ref(x, A_Lambda_re, A_Lambda_im, A_B_re, A_B_im, A_C_re, A_C_im, A_log_dt, A_Dskip)
    b = _B_ref(x, B_wqkv, B_wo)
    return g * a + (1 - g) * b
```

```python
class Asm:
    def __init__(self):
        self.hdr = []
        self.lines = []
        self.kds = []
    def __call__(self, s):
        for l in s.strip("\n").split("\n"):
            self.lines.append("  " + l.strip())
    def label(self, n):
        self.lines.append(n + ":")
    def raw(self, s):
        self.lines.append(s)
    def kernel(self, name, grid, block, lds, vgpr, sgpr=96, accum=None, launch=True):
        if launch:
            self.hdr.append(f"; @launch kernel={name} grid=({grid},1,1) block=({block},1,1) lds={lds}")
        self.lines += [f".globl {name}", ".p2align 8", f".type {name},@function", f"{name}:"]
        if accum is None: accum = (vgpr + 3) // 4 * 4
        self.kds.append((name, vgpr, sgpr, accum))
    def text(self, pre=""):
        out = []
        if pre: out.append(pre.rstrip("\n"))
        out += self.hdr
        out += ['.amdgcn_target "amdgcn-amd-amdhsa--gfx950"', ".text"]
        out += self.lines
        out.append('.section .rodata,"a"')
        for name, vgpr, sgpr, accum in self.kds:
            out += [".p2align 6", f".amdhsa_kernel {name}",
                    f"  .amdhsa_next_free_vgpr {vgpr}", f"  .amdhsa_next_free_sgpr {sgpr}",
                    f"  .amdhsa_accum_offset {accum}",
                    "  .amdhsa_group_segment_fixed_size 0", "  .amdhsa_kernarg_size 128",
                    "  .amdhsa_user_sgpr_count 2", "  .amdhsa_user_sgpr_kernarg_segment_ptr 1",
                    "  .amdhsa_system_sgpr_workgroup_id_x 1", ".end_amdhsa_kernel"]
        return "\n".join(out) + "\n"
```

```python
import sys, math, struct
sys.path.insert(0, "bench")
from asmlib import Asm

NAME = "gated_mix__ssm_conv_s5__softmax_full_mha__prompt"

WS_FLAG = 0x1000
WS_E    = 0x40000
WS_KV   = 0x100000
WS_H    = 0x500000
WS_O    = 0x900000
WS_DBG  = 0xC00000
WS_SIZE = 0x2000000
F_KV, F_E, F_H, F_O = 0, 1, 2, 3

L_X    = 0
L_RING = 65536
NS     = 11
L_Q    = 131072
L_OX   = 139264
L_MISC = 158 * 1024
L_GW   = L_MISC
L_G    = L_MISC + 1024
L_CNT  = L_MISC + 1024 + 256
C_E, C_H, C_O, C_SB = 0, 4, 8, 12
C_PA   = 16
C_PS   = 48
LDS_BYTES = 160 * 1024
L_C    = 0
L_WO   = 0
L_FX   = 65536

def f32bits(x):
    return struct.unpack("<I", struct.pack("<f", x))[0]

QSCALE = 0.25 * math.log2(math.e)
LOG2E = math.log2(math.e)

class Regs:
    def __init__(self, start, limit):
        self.n = start; self.limit = limit; self.hi = start
    def alloc(self, cnt, align=1):
        self.n = (self.n + align - 1) // align * align
        r = self.n; self.n += cnt
        assert self.n <= self.limit, f"out of registers {self.n} > {self.limit}"
        self.hi = max(self.hi, self.n)
        return r
    def mark(self): return self.n
    def reset(self, m): self.n = m

def vr(r, n=1):
    return f"v{r}" if n == 1 else f"v[{r}:{r+n-1}]"

S_WG, S_WAVE, S_TB, S_CG, S_NONCE = 2, 3, 4, 5, 6
R_X, R_W, R_WS, R_OUT, R_BRE, R_BIM, R_C, R_WO, R_T, R_E = 8, 12, 16, 20, 24, 28, 32, 36, 40, 44
def srd(r): return f"s[{r}:{r+3}]"
NVGPR = 168
SPIN_MAX = 200000

class Gen:
    def __init__(self, stop=None, stamps=False, pub=12, mapmode=1, prio_switch=27, dbg=False):
        self.a = Asm()
        self.stop = stop
        self.stamps = stamps
        self.pub = pub
        self.mapmode = mapmode
        self.prio_switch = prio_switch
        self.uid = 0
        self.units = []
        for kc in range(8):
            self.units += [("W", 1, kc), ("W", 2, kc)]
        for kc in range(8):
            self.units += [("W", 0, kc), ("B", 0, kc), ("B", 1, kc)]
        self.uidx = {u: i for i, u in enumerate(self.units)}

    def lbl(self, p):
        self.uid += 1
        return f"L{p}{self.uid}"
    def slot_base(self, u):
        return L_RING + (self.uidx[u] % NS) * 8192
    def stage_units(self, s):
        if s < 8: return [("W", 1, s), ("W", 2, s)]
        return [("W", 0, s-8), ("B", 0, s-8), ("B", 1, s-8)]

    def stamp(self, idx):
        if not self.stamps: return
        a = self.a
        a(f"""s_memrealtime s[80:81]
        s_lshl_b32 s82, s{S_WG}, 4
        s_add_u32 s82, s82, s{S_WAVE}
        s_lshl_b32 s82, s82, 7
        s_add_u32 s82, s82, {WS_DBG + idx*4}
        s_waitcnt lgkmcnt(0)
        v_mov_b32 v166, s80
        v_mov_b32 v167, s82
        s_mov_b64 s[84:85], exec
        s_mov_b64 exec, 1
        buffer_store_dword v166, v167, {srd(R_WS)}, 0 offen
        s_mov_b64 exec, s[84:85]""")

    def prologue(self):
        a = self.a
        a.kernel(NAME + "_kernel", 256, 768, LDS_BYTES, NVGPR, sgpr=96)
        a(f"""
        s_cmp_ge_u32 s{S_WG}, 256
        s_cbranch_scc1 L_exit
        s_load_dwordx2 s[{R_X}:{R_X+1}], s[0:1], 0
        s_load_dwordx2 s[{R_W}:{R_W+1}], s[0:1], 80
        s_load_dwordx2 s[{R_WS}:{R_WS+1}], s[0:1], 120
        s_load_dwordx2 s[{R_BRE}:{R_BRE+1}], s[0:1], 24
        s_load_dwordx2 s[{R_BIM}:{R_BIM+1}], s[0:1], 32
        s_load_dwordx2 s[{R_OUT}:{R_OUT+1}], s[0:1], 104
        s_load_dwordx2 s[{R_WO}:{R_WO+1}], s[0:1], 88
        v_lshrrev_b32 v1, 6, v0
        v_and_b32 v0, 63, v0
        s_mov_b32 s{R_X+2}, {2048*512*2}
        v_readfirstlane_b32 s{S_WAVE}, v1
        s_mov_b32 s{R_X+3}, 0x20000
        s_mov_b32 s{R_W+2}, {512*1536*2}
        s_mov_b32 s{R_W+3}, 0x20000
        s_mov_b32 s{R_WS+2}, {WS_SIZE}
        s_mov_b32 s{R_WS+3}, 0x20000
        s_mov_b32 s{R_BRE+2}, {512*512*2}
        s_mov_b32 s{R_BRE+3}, 0x20000
        s_mov_b32 s{R_BIM+2}, {512*512*2}
        s_mov_b32 s{R_BIM+3}, 0x20000
        s_mov_b32 s{R_OUT+2}, {2048*512*4}
        s_mov_b32 s{R_OUT+3}, 0x20000
        s_mov_b32 s{R_WO+2}, {512*512*2}
        s_mov_b32 s{R_WO+3}, 0x20000
        """)
        if self.mapmode == 0:
            a(f"s_and_b32 s{S_CG}, s{S_WG}, 7\ns_lshr_b32 s{S_TB}, s{S_WG}, 3")
        elif self.mapmode == 1:
            a(f"""s_and_b32 s48, s{S_WG}, 7
            s_lshr_b32 s49, s{S_WG}, 3
            s_lshr_b32 s{S_TB}, s48, 1
            s_lshl_b32 s{S_TB}, s{S_TB}, 3
            s_and_b32 s50, s49, 7
            s_add_u32 s{S_TB}, s{S_TB}, s50
            s_and_b32 s{S_CG}, s48, 1
            s_lshl_b32 s{S_CG}, s{S_CG}, 2
            s_lshr_b32 s50, s49, 3
            s_add_u32 s{S_CG}, s{S_CG}, s50""")
        elif self.mapmode == 2:
            a(f"""s_and_b32 s48, s{S_WG}, 7
            s_lshr_b32 s49, s{S_WG}, 3
            s_lshl_b32 s{S_TB}, s48, 2
            s_and_b32 s50, s49, 3
            s_add_u32 s{S_TB}, s{S_TB}, s50
            s_lshr_b32 s{S_CG}, s49, 2""")
        elif self.mapmode == 3:
            a(f"""s_and_b32 s48, s{S_WG}, 7
            s_lshr_b32 s49, s{S_WG}, 3
            s_lshr_b32 s{S_TB}, s48, 2
            s_lshl_b32 s{S_TB}, s{S_TB}, 4
            s_and_b32 s50, s49, 15
            s_add_u32 s{S_TB}, s{S_TB}, s50
            s_and_b32 s{S_CG}, s48, 3
            s_lshl_b32 s{S_CG}, s{S_CG}, 1
            s_lshr_b32 s50, s49, 4
            s_add_u32 s{S_CG}, s{S_CG}, s50""")
        a(f"""
        s_cmp_ge_u32 s{S_WAVE}, 8
        s_cbranch_scc1 L_swave
        s_cmp_ge_u32 s{S_WAVE}, 4
        s_cbranch_scc0 L_comp
        """)

    def load_nonce(self):
        self.a(f"s_load_dword s{S_NONCE}, s[{R_WS}:{R_WS+1}], 0")
    def fix_nonce(self):
        self.a(f"s_mul_i32 s{S_NONCE}, s{S_NONCE}, 0x9E3779B1\ns_add_u32 s{S_NONCE}, s{S_NONCE}, 0x7F4A7C15")

    def tau(self, dst, j, t1):
        a = self.a
        a(f"""v_and_b32 {vr(dst)}, 3, {vr(j)}
        v_lshrrev_b32 {vr(t1)}, 3, {vr(j)}
        v_lshl_add_u32 {vr(dst)}, {vr(t1)}, 2, {vr(dst)}
        v_and_b32 {vr(t1)}, 4, {vr(j)}
        v_lshl_add_u32 {vr(dst)}, {vr(t1)}, 2, {vr(dst)}""")
    def swap23(self, dst, j, t1):
        a = self.a
        a(f"""v_and_b32 {vr(dst)}, 0x13, {vr(j)}
        v_and_b32 {vr(t1)}, 4, {vr(j)}
        v_lshl_add_u32 {vr(dst)}, {vr(t1)}, 1, {vr(dst)}
        v_and_b32 {vr(t1)}, 8, {vr(j)}
        v_lshrrev_b32 {vr(t1)}, 1, {vr(t1)}
        v_add_u32 {vr(dst)}, {vr(dst)}, {vr(t1)}""")
    def rowfrag_addrs(self, dst4, row, h, t1, t2, base):
        a = self.a
        a(f"""v_lshrrev_b32 {vr(t1)}, 1, {vr(row)}
        v_and_b32 {vr(t1)}, 7, {vr(t1)}
        v_xor_b32 {vr(t1)}, {vr(t1)}, {vr(h)}
        v_lshlrev_b32 {vr(t1)}, 4, {vr(t1)}
        v_lshlrev_b32 {vr(t2)}, 7, {vr(row)}""")
        if base: a(f"v_add_u32 {vr(t2)}, {base}, {vr(t2)}")
        for ks in range(4):
            a(f"v_xor_b32 {vr(dst4+ks)}, {ks*32}, {vr(t1)}\nv_add_u32 {vr(dst4+ks)}, {vr(dst4+ks)}, {vr(t2)}")
    def tr_addr(self, dst, lane, ft_s, hmul, t1, t2, t3, base):
        a = self.a
        a(f"""v_bfe_u32 {vr(t1)}, {vr(lane)}, 2, 2
        v_lshrrev_b32 {vr(t2)}, 5, {vr(lane)}
        v_mul_u32_u24 {vr(t2)}, {hmul}, {vr(t2)}
        v_add_u32 {vr(t2)}, {vr(t2)}, {vr(t1)}
        v_lshlrev_b32 {vr(dst)}, 7, {vr(t2)}
        v_bfe_u32 {vr(t2)}, {vr(lane)}, 4, 1
        v_lshlrev_b32 {vr(t2)}, 1, {vr(t2)}
        v_bfe_u32 {vr(t3)}, {vr(lane)}, 1, 1
        v_add_u32 {vr(t2)}, {vr(t2)}, {vr(t3)}
        v_mov_b32 {vr(t3)}, {ft_s}
        v_lshl_add_u32 {vr(t2)}, {vr(t3)}, 2, {vr(t2)}
        v_lshrrev_b32 {vr(t1)}, 1, {vr(t1)}
        v_lshlrev_b32 {vr(t1)}, 2, {vr(t1)}
        v_xor_b32 {vr(t2)}, {vr(t2)}, {vr(t1)}
        v_lshl_add_u32 {vr(dst)}, {vr(t2)}, 4, {vr(dst)}
        v_and_b32 {vr(t1)}, 1, {vr(lane)}
        v_lshl_add_u32 {vr(dst)}, {vr(t1)}, 3, {vr(dst)}""")
        if base: a(f"v_add_u32 {vr(dst)}, {base}, {vr(dst)}")
    def dma_offsets(self, vR0, vR1, vW, lw_s, wstride, t1, t2, t3):
        a = self.a
        a(f"""v_lshrrev_b32 {vr(t1)}, 3, v0
        v_and_b32 {vr(t2)}, 7, v0
        s_lshl_b32 s48, {lw_s}, 4
        v_add_u32 {vr(t3)}, s48, {vr(t1)}
        v_lshlrev_b32 {vr(vR0)}, 10, {vr(t3)}
        v_mul_u32_u24 {vr(vW)}, {wstride}, {vr(t3)}
        v_lshrrev_b32 {vr(t1)}, 1, {vr(t1)}
        v_xor_b32 {vr(t3)}, {vr(t2)}, {vr(t1)}
        v_lshl_add_u32 {vr(vR0)}, {vr(t3)}, 4, {vr(vR0)}
        v_xor_b32 {vr(vR1)}, 64, {vr(vR0)}
        v_add_u32 {vr(vR1)}, 8192, {vr(vR1)}
        v_and_b32 {vr(t1)}, 1, {vr(t1)}
        v_lshlrev_b32 {vr(t1)}, 2, {vr(t1)}
        v_xor_b32 {vr(t3)}, {vr(t2)}, {vr(t1)}
        v_lshl_add_u32 {vr(vW)}, {vr(t3)}, 4, {vr(vW)}""")

    def flag_addr_s(self, dst, kind):
        self.a(f"""s_lshl_b32 s{dst}, s{S_TB}, 3
        s_add_u32 s{dst}, s{dst}, s{S_CG}
        s_lshl_b32 s{dst}, s{dst}, 7
        s_add_u32 s{dst}, s{dst}, {WS_FLAG + kind*256*128}""")
    def publish(self, kind, t1, t2):
        a = self.a
        self.flag_addr_s(48, kind)
        a(f"""v_mov_b32 {vr(t1)}, s48
        v_mov_b32 {vr(t2)}, s{S_NONCE}
        s_mov_b64 exec, 1
        buffer_store_dword {vr(t2)}, {vr(t1)}, {srd(R_WS)}, 0 offen sc1
        s_mov_b64 exec, -1""")
    def poll(self, kind, along, nl_s, t1, t2, sleep=2):
        a = self.a
        L = self.lbl("poll"); Lg = self.lbl("pollgo")
        if along == "tb":
            a(f"""s_lshl_b32 s48, s{S_CG}, 7
            s_add_u32 s48, s48, {WS_FLAG + kind*256*128}
            v_lshlrev_b32 {vr(t1)}, 10, v0""")
        else:
            a(f"""s_lshl_b32 s48, s{S_TB}, 10
            s_add_u32 s48, s48, {WS_FLAG + kind*256*128}
            v_lshlrev_b32 {vr(t1)}, 7, v0""")
        a(f"""v_add_u32 {vr(t1)}, s48, {vr(t1)}
        v_cmp_gt_u32 vcc, {nl_s}, v0
        s_mov_b32 s49, 0
        s_mov_b64 exec, vcc""")
        a.label(L)
        a(f"""buffer_load_dword {vr(t2)}, {vr(t1)}, {srd(R_WS)}, 0 offen sc1
        s_add_u32 s49, s49, 1
        s_waitcnt vmcnt(0)
        v_cmp_ne_u32 vcc, s{S_NONCE}, {vr(t2)}
        s_cmp_gt_u32 s49, {SPIN_MAX}
        s_cbranch_scc1 {Lg}
        s_cbranch_vccz {Lg}
        s_sleep {sleep}
        s_branch {L}""")
        a.label(Lg)
        a("s_mov_b64 exec, -1")
    def arrive_publish(self, cnt_off, n, kind, t1, t2):
        a = self.a
        L = self.lbl("arr")
        a(f"""s_waitcnt vmcnt(0)
        v_mov_b32 {vr(t1)}, {L_CNT + cnt_off}
        v_mov_b32 {vr(t2)}, 1
        s_mov_b64 exec, 1
        ds_add_rtn_u32 {vr(t2)}, {vr(t1)}, {vr(t2)}
        s_waitcnt lgkmcnt(0)
        s_mov_b64 exec, -1
        v_readfirstlane_b32 s49, {vr(t2)}
        s_cmp_eq_u32 s49, {n-1}
        s_cbranch_scc0 {L}""")
        self.publish(kind, t1, t2)
        a.label(L)
    def lds_wait_ge(self, addr_v, target, t2, sleep=1):
        a = self.a
        L = self.lbl("lw"); Lg = self.lbl("lwgo")
        a("s_mov_b32 s49, 0")
        a.label(L)
        a(f"""ds_read_b32 {vr(t2)}, {vr(addr_v)}
        s_add_u32 s49, s49, 1
        s_waitcnt lgkmcnt(0)
        v_readfirstlane_b32 s50, {vr(t2)}
        s_cmp_gt_u32 s49, {SPIN_MAX*8}
        s_cbranch_scc1 {Lg}
        s_cmp_ge_u32 s50, {target}
        s_cbranch_scc1 {Lg}
        s_sleep {sleep}
        s_branch {L}""")
        a.label(Lg)
    def sbarrier(self, k, t1, t2):
        a = self.a
        a(f"""s_waitcnt lgkmcnt(0)
        v_mov_b32 {vr(t1)}, {L_CNT + C_SB}
        v_mov_b32 {vr(t2)}, 1
        s_mov_b64 exec, 1
        ds_add_u32 {vr(t1)}, {vr(t2)}
        s_mov_b64 exec, -1""")
        self.lds_wait_ge(t1, 4*k, t2)

    def loader(self):
        a = self.a
        a.label("L_load")
        vR0, vR1, vW, t1, t2, t3 = 1, 2, 3, 4, 5, 6
        a(f"s_sub_u32 s51, s{S_WAVE}, 4")
        self.dma_offsets(vR0, vR1, vW, "s51", 3072, t1, t2, t3)
        a(f"""s_lshl_b32 s52, s{S_TB}, 16
        s_lshl_b32 s53, s{S_CG}, 16
        s_lshl_b32 s54, s{S_CG}, 7
        s_lshl_b32 s55, s51, 11
        s_waitcnt lgkmcnt(0)""")
        self.load_nonce()
        issued = []
        def issue(u):
            if u[0] == "x":
                base = L_X + u[1] * 8192
                for e in range(2):
                    a(f"s_add_u32 m0, s55, {base + e*1024}\ns_add_u32 s56, s52, {u[1]*128}")
                    a(f"buffer_load_dwordx4 {vr(vR0+e)}, {srd(R_X)}, s56 offen lds")
                    issued.append(u)
            elif u[0] == "W":
                base = self.slot_base(u)
                for e in range(2):
                    a(f"s_add_u32 m0, s55, {base + e*1024}\ns_add_u32 s56, s54, {u[2]*64*3072 + u[1]*1024 + e*24576}")
                    a(f"buffer_load_dwordx4 {vr(vW)}, {srd(R_W)}, s56 offen lds")
                    issued.append(u)
            else:
                base = self.slot_base(u)
                for e in range(2):
                    a(f"s_add_u32 m0, s55, {base + e*1024}\ns_add_u32 s56, s53, {u[2]*128}")
                    a(f"buffer_load_dwordx4 {vr(vR0+e)}, {srd(R_BRE if u[1]==0 else R_BIM)}, s56 offen lds")
                    issued.append(u)
        nxt = 0
        for s in range(6):
            issue(("x", s))
            for u in self.stage_units(s):
                if nxt < NS:
                    assert self.units[nxt] == u
                    issue(u); nxt += 1
        issue(("x", 6)); issue(("x", 7))
        consumed = 0
        for s in range(16):
            need = set(self.stage_units(s))
            if s < 8: need.add(("x", s))
            last = max(i for i, t in enumerate(issued) if t in need)
            for u in need: assert u in issued, (s, u)
            n = len(issued) - 1 - last
            a(f"s_waitcnt vmcnt({n})\ns_barrier")
            if s >= 1:
                consumed += len(self.stage_units(s-1))
                while nxt < len(self.units) and nxt < consumed + NS:
                    issue(self.units[nxt]); nxt += 1
        assert nxt == len(self.units)
        a("s_waitcnt lgkmcnt(0)")
        self.fix_nonce()
        self.stamp(1)
        L = self.lbl("nopoll")
        a(f"s_cmp_eq_u32 s{S_WAVE}, 4\ns_cbranch_scc0 {L}")
        self.poll(F_KV, "tb", "32", 4, 5)
        a.label(L)
        self.stamp(2)
        a("s_branch L_att_pre")

    def compute(self):
        a = self.a
        a.label("L_comp")
        R = Regs(1, NVGPR)
        j, h, t1, t2, t3, row = [R.alloc(1) for _ in range(6)]
        xa = R.alloc(4)
        wlo, whi = R.alloc(1), R.alloc(1)
        gwa = R.alloc(1)
        sto = R.alloc(1)
        acc = [R.alloc(16, 4), R.alloc(16, 4)]
        P = [R.alloc(48, 4), R.alloc(48, 4)]
        pk = R.alloc(8, 4)
        a(f"""v_and_b32 {vr(j)}, 31, v0
        v_lshrrev_b32 {vr(h)}, 5, v0
        s_lshr_b32 s51, s{S_WAVE}, 1
        s_and_b32 s52, s{S_WAVE}, 1""")
        self.tau(row, j, t1)
        self.rowfrag_addrs(xa, row, h, t1, t2, L_X)
        self.tr_addr(wlo, 0, "s51", 8, t1, t2, t3, 65536)
        a(f"v_add_u32 {vr(whi)}, 65536, {vr(wlo)}")
        a(f"v_lshlrev_b32 {vr(gwa)}, 4, {vr(h)}\nv_add_u32 {vr(gwa)}, {L_GW}, {vr(gwa)}")
        for r in range(16):
            a(f"v_mov_b32 {vr(acc[0]+r)}, 0\nv_mov_b32 {vr(acc[1]+r)}, 0")
        a("s_waitcnt lgkmcnt(0)")
        self.load_nonce()
        def wref(base):
            if base < 131072: return wlo, base - 65536
            return whi, base - 131072
        a("s_cmp_eq_u32 s52, 0\ns_cbranch_scc0 L_compV")
        for m in (1, 2):
            if m == 2: a.label("L_compV")
            def reads(s):
                t = []
                b = P[s & 1]
                wr, wo_ = wref(self.slot_base(("W", m, s)))
                for ks in range(4):
                    t.append(f"ds_read_b128 {vr(b+12*ks,4)}, {vr(xa+ks)} offset:{s*8192}")
                    t.append(f"ds_read_b64_tr_b16 {vr(b+12*ks+8,2)}, {vr(wr)} offset:{wo_ + ks*2048}")
                    t.append(f"ds_read_b64_tr_b16 {vr(b+12*ks+10,2)}, {vr(wr)} offset:{wo_ + ks*2048 + 512}")
                    t.append(f"ds_read_b128 {vr(b+12*ks+4,4)}, {vr(xa+ks)} offset:{s*8192 + 4096}")
                return t
            def mf(s):
                t = []
                b = P[s & 1]
                for ks in range(4):
                    for tt in range(2):
                        X = vr(b+12*ks+4*tt, 4); Wf = vr(b+12*ks+8, 4)
                        if m == 1: t.append(f"v_mfma_f32_32x32x16_bf16 {vr(acc[tt],16)}, {Wf}, {X}, {vr(acc[tt],16)}")
                        else:      t.append(f"v_mfma_f32_32x32x16_bf16 {vr(acc[tt],16)}, {X}, {Wf}, {vr(acc[tt],16)}")
                return t
            for s in range(8):
                a("s_barrier")
                if s == 0 and m == 1: self.stamp(0)
                rd = reads(s); mm = mf(s-1) if s > 0 else []
                for i in range(8):
                    a(rd[2*i]); a(rd[2*i+1])
                    if mm: a(mm[i])
                if s < 7:
                    a("s_waitcnt lgkmcnt(0)")
            mm = mf(7)
            for ks in range(4):
                a(f"s_waitcnt lgkmcnt({13-4*ks})"); a(mm[2*ks])
                a(f"s_waitcnt lgkmcnt({12-4*ks})"); a(mm[2*ks+1])
            a(f"""s_lshl_b32 s53, s{S_CG}, 2
            s_lshl_b32 s54, s51, 1
            s_add_u32 s53, s53, s54
            s_lshl_b32 s53, s53, 17
            s_lshl_b32 s54, s{S_TB}, 12
            s_add_u32 s53, s53, s54
            s_add_u32 s53, s53, {WS_KV}""")
            if m == 1:
                self.swap23(sto, j, t1)
                a(f"v_lshl_add_u32 {vr(sto)}, {vr(h)}, 5, {vr(sto)}\nv_lshlrev_b32 {vr(sto)}, 4, {vr(sto)}")
                a(f"s_add_u32 s54, s53, 131072")
            else:
                a(f"""v_and_b32 {vr(sto)}, 15, {vr(j)}
                v_lshlrev_b32 {vr(sto)}, 4, {vr(sto)}
                v_lshl_add_u32 {vr(sto)}, {vr(h)}, 8, {vr(sto)}
                v_lshrrev_b32 {vr(t1)}, 4, {vr(j)}
                v_lshl_add_u32 {vr(sto)}, {vr(t1)}, 17, {vr(sto)}""")
            a("s_nop 7")
            for tt in range(2):
                for g in range(2):
                    d = P[0] + 8*tt + 4*g
                    for i in range(4):
                        a(f"v_cvt_pk_bf16_f32 {vr(d+i)}, {vr(acc[tt]+8*g+2*i)}, {vr(acc[tt]+8*g+2*i+1)}")
                    if m == 1:
                        a(f"buffer_store_dwordx4 {vr(d,4)}, {vr(sto)}, {srd(R_WS)}, {'s53' if g==0 else 's54'} offen offset:{tt*2048} sc1")
                    else:
                        a(f"buffer_store_dwordx4 {vr(d,4)}, {vr(sto)}, {srd(R_WS)}, s53 offen offset:{tt*2048 + 1024 + g*512} sc1")
            if m == 1: a("s_branch L_compQ")
        a.label("L_compQ")
        self.stamp(1)
        a(f"s_lshl_b32 s53, s52, 12")
        for ks in range(4): a(f"v_add_u32 {vr(xa+ks)}, s53, {vr(xa+ks)}")
        for r in range(16):
            a(f"v_mov_b32 {vr(acc[0]+r)}, 0\nv_mov_b32 {vr(acc[1]+r)}, 0")
        a("s_waitcnt lgkmcnt(0)")
        self.fix_nonce()
        Pq = [P[1], P[0]]
        def qreads(s):
            t = []
            b = Pq[s & 1]
            wr, wo_ = wref(self.slot_base(("W", 0, s-8)))
            for ks in range(4):
                t.append(f"ds_read_b128 {vr(b+12*ks,4)}, {vr(xa+ks)} offset:{(s-8)*8192}")
                t.append(f"ds_read_b64_tr_b16 {vr(b+12*ks+4,2)}, {vr(wr)} offset:{wo_ + ks*2048}")
                t.append(f"ds_read_b64_tr_b16 {vr(b+12*ks+6,2)}, {vr(wr)} offset:{wo_ + ks*2048 + 512}")
                t.append(f"ds_read_b128 {vr(b+12*ks+8,4)}, {vr(gwa)} offset:{(s-8)*128 + ks*32}")
            return t
        def qmf(s):
            t = []
            b = Pq[s & 1]
            for ks in range(4):
                t.append(f"v_mfma_f32_32x32x16_bf16 {vr(acc[0],16)}, {vr(b+12*ks+4,4)}, {vr(b+12*ks,4)}, {vr(acc[0],16)}")
                t.append(f"v_mfma_f32_32x32x16_bf16 {vr(acc[1],16)}, {vr(b+12*ks+8,4)}, {vr(b+12*ks,4)}, {vr(acc[1],16)}")
            return t
        for s in range(8, 16):
            if s == self.pub: a("s_waitcnt vmcnt(0)")
            a("s_barrier")
            if s == self.pub:
                L = self.lbl("nopub")
                a(f"s_cmp_eq_u32 s{S_WAVE}, 0\ns_cbranch_scc0 {L}")
                self.publish(F_KV, t1, t2)
                a.label(L)
                self.stamp(2)
            rd = qreads(s); mm = qmf(s-1) if s > 8 else []
            for i in range(8):
                a(rd[2*i]); a(rd[2*i+1])
                if mm: a(mm[i])
            a("s_waitcnt lgkmcnt(0)")
        for x in qmf(15): a(x)
        a(f"""s_mov_b32 s53, {f32bits(QSCALE)}
        s_lshl_b32 s54, s51, 12
        s_lshl_b32 s55, s52, 10
        s_add_u32 s54, s54, s55
        s_add_u32 s54, s54, {L_Q}
        v_lshlrev_b32 {vr(sto)}, 4, v0
        v_add_u32 {vr(sto)}, s54, {vr(sto)}
        s_nop 7""")
        for r in range(16): a(f"v_mul_f32 {vr(acc[0]+r)}, s53, {vr(acc[0]+r)}")
        for g in range(2):
            for i in range(4):
                a(f"v_cvt_pk_bf16_f32 {vr(pk+4*g+i)}, {vr(acc[0]+8*g+2*i)}, {vr(acc[0]+8*g+2*i+1)}")
            a(f"ds_write_b128 {vr(sto)}, {vr(pk+4*g,4)} offset:{g*2048}")
        lg = acc[1]
        a(f"""v_cvt_pk_bf16_f32 {vr(t1)}, {vr(lg)}, {vr(lg)}
        v_and_b32 {vr(t1)}, 0xffff0000, {vr(t1)}
        v_mul_f32 {vr(t1)}, {f32bits(-LOG2E)}, {vr(t1)}
        v_exp_f32 {vr(t1)}, {vr(t1)}
        s_nop 0
        v_add_f32 {vr(t1)}, 1.0, {vr(t1)}
        v_rcp_f32 {vr(t1)}, {vr(t1)}
        s_nop 0
        v_cvt_pk_bf16_f32 {vr(t1)}, {vr(t1)}, {vr(t1)}
        v_and_b32 {vr(t1)}, 0xffff0000, {vr(t1)}
        s_lshl_b32 s55, s52, 7
        s_add_u32 s55, s55, {L_G}
        v_lshlrev_b32 {vr(t2)}, 2, {vr(row)}
        v_add_u32 {vr(t2)}, s55, {vr(t2)}
        ds_write_b32 {vr(t2)}, {vr(t1)}""")
        self.stamp(3)

    def attention(self):
        a = self.a
        a.label("L_att_pre")
        R = Regs(1, NVGPR)
        t1, t2, t3, t4 = [R.alloc(1) for _ in range(4)]
        vK, vV, idx, gq = [R.alloc(1) for _ in range(4)]
        q = [R.alloc(4, 4), R.alloc(4, 4)]
        S = [R.alloc(16, 4), R.alloc(16, 4)]
        O = [R.alloc(16, 4), R.alloc(16, 4)]
        D = 4
        KV = [R.alloc(12, 4) for _ in range(D)]
        M = R.alloc(16, 4)
        a(f"""v_and_b32 {vr(t1)}, 27, v0
        v_cmp_eq_u32 vcc, 16, {vr(t1)}
        v_mov_b32 {vr(t2)}, 0x3f803f80
        v_mov_b32 {vr(idx)}, 0xdddddddd
        v_cndmask_b32 {vr(t2)}, 0, {vr(t2)}, vcc""")
        for st in range(D):
            for i in range(4, 12): a(f"v_mov_b32 {vr(KV[st]+i)}, {vr(t2)}")
        for r in range(16):
            a(f"v_mov_b32 {vr(O[0]+r)}, 0\nv_mov_b32 {vr(O[1]+r)}, 0")
        for r in range(8, 16): a(f"v_mov_b32 {vr(S[1]+r)}, 0")
        a(f"""v_lshlrev_b32 {vr(vK)}, 4, v0
        v_and_b32 {vr(vV)}, 15, v0
        v_lshlrev_b32 {vr(vV)}, 4, {vr(vV)}
        v_lshrrev_b32 {vr(t1)}, 5, v0
        v_lshl_add_u32 {vr(vV)}, {vr(t1)}, 8, {vr(vV)}
        s_and_b32 s51, s{S_WAVE}, 3
        s_lshr_b32 s52, s{S_WAVE}, 2
        s_lshl_b32 s53, s{S_CG}, 2
        s_add_u32 s53, s53, s51
        s_lshl_b32 s53, s53, 17
        s_add_u32 s57, s53, {WS_KV}
        s_lshl_b32 s54, s52, 16
        s_add_u32 s53, s57, s54
        s_lshl_b32 s54, s{S_TB}, 12
        s_and_b32 s54, s54, 0xffff
        s_mov_b32 s58, 0x0000ffff
        s_mov_b32 s59, 0x0000ffff
        s_lshl_b32 s55, s51, 11
        s_add_u32 s55, s55, {L_Q}
        v_add_u32 {vr(t3)}, s55, {vr(vK)}
        s_waitcnt lgkmcnt(0)
        s_barrier""")
        if self.stop == "A":
            a("s_endpgm")
            return
        def loads(st):
            a(f"""s_add_u32 s56, s53, s54
            buffer_load_dwordx4 {vr(KV[st],4)}, {vr(vK)}, {srd(R_WS)}, s56 offen sc1
            s_mov_b64 exec, s[58:59]
            buffer_load_dwordx4 {vr(KV[st]+4,4)}, {vr(vV)}, {srd(R_WS)}, s56 offen offset:1024 sc1
            buffer_load_dwordx4 {vr(KV[st]+8,4)}, {vr(vV)}, {srd(R_WS)}, s56 offen offset:1536 sc1
            s_mov_b64 exec, -1
            s_add_u32 s54, s54, 2048
            s_and_b32 s54, s54, 0xffff""")
        for st in range(D-1): loads(st)
        a(f"""ds_read_b128 {vr(q[0],4)}, {vr(t3)}
        ds_read_b128 {vr(q[1],4)}, {vr(t3)} offset:1024""")
        a(f"v_and_b32 {vr(t1)}, 31, v0")
        self.tau(t2, t1, t4)
        a(f"""s_lshl_b32 s55, s52, 7
        s_add_u32 s55, s55, {L_G}
        v_lshlrev_b32 {vr(t2)}, 2, {vr(t2)}
        v_add_u32 {vr(t2)}, s55, {vr(t2)}
        ds_read_b32 {vr(gq)}, {vr(t2)}
        s_cmp_eq_u32 s52, 0
        s_cbranch_scc1 L_noprio
        s_setprio 1""")
        a.label("L_noprio")
        a(f"""s_waitcnt vmcnt({3*(D-2)}) lgkmcnt(0)
        v_mfma_f32_32x32x16_bf16 {vr(S[0],16)}, {vr(KV[0],4)}, {vr(q[0],4)}, 0
        s_mov_b32 s60, {32//D}
        v_sub_f32 {vr(gq)}, 1.0, {vr(gq)}
        s_nop 7
        s_nop 3""")
        self.stamp(4)
        a(".p2align 6")
        a.label("L_att_loop")
        def ex(b, lo, hi):
            for r in range(lo, hi): a(f"v_exp_f32 {vr(S[b]+r)}, {vr(S[b]+r)}")
        def smf(o, v, b, half):
            a(f"v_smfmac_f32_32x32x32_bf16 {vr(O[o],16)}, {vr(v,4)}, {vr(S[b]+8*half,8)}, {vr(idx)}")
        for st in range(D):
            pv = (st - 1) % D; nx = (st + 1) % D
            ex(0, 0, 2)
            smf(1, KV[pv]+8, 1, 1)
            a(f"v_mfma_f32_32x32x16_bf16 {vr(S[1],16)}, {vr(KV[st],4)}, {vr(q[1],4)}, 0")
            ex(0, 2, 4)
            loads(pv)
            ex(0, 4, 10)
            smf(0, KV[st]+4, 0, 0)
            ex(0, 10, 16)
            ex(1, 0, 2)
            smf(0, KV[st]+8, 0, 1)
            a(f"s_waitcnt vmcnt({3*(D-2)})")
            a(f"v_mfma_f32_32x32x16_bf16 {vr(S[0],16)}, {vr(KV[nx],4)}, {vr(q[0],4)}, 0")
            ex(1, 2, 10)
            smf(1, KV[st]+4, 1, 0)
            if st == D-1:
                a(f"s_sub_u32 s60, s60, 1")
                a(f"s_cmp_eq_u32 s60, {32//D - self.prio_switch//D}")
                a(f"s_cbranch_scc0 L_keepprio\ns_setprio 0")
                a.label("L_keepprio")
                a("s_cmp_lg_u32 s60, 0")
            ex(1, 10, 16)
        a("s_cbranch_scc1 L_att_loop")
        a("s_nop 0")
        smf(1, KV[D-1]+8, 1, 1)
        self.stamp(5)
        a(f"""s_mul_i32 s55, s{S_WAVE}, 2304
        s_add_u32 s55, s55, {L_OX}
        v_add_u32 {vr(t1)}, s55, {vr(vK)}
        s_xor_b32 s56, s{S_WAVE}, 4
        s_mul_i32 s55, s56, 2304
        s_add_u32 s55, s55, {L_OX}
        v_add_u32 {vr(t2)}, s55, {vr(vK)}
        v_lshrrev_b32 {vr(t3)}, 2, {vr(vK)}
        v_subrev_u32 {vr(t3)}, {vr(vK)}, {vr(t3)}
        s_cmp_eq_u32 s52, 0
        s_cbranch_scc1 L_x0
        s_nop 7
        s_nop 3""")
        for r in range(9): a(f"v_swap_b32 {vr(O[0]+r)}, {vr(O[1]+r)}")
        for r in range(4): a(f"v_mov_b32 {vr(q[0]+r)}, {vr(q[1]+r)}")
        a.label("L_x0")
        a(f"""s_nop 7
        s_nop 3
        ds_write_b128 {vr(t1)}, {vr(O[1],4)}
        ds_write_b128 {vr(t1)}, {vr(O[1]+4,4)} offset:1024
        v_add_u32 {vr(t4)}, {vr(t1)}, {vr(t3)}
        ds_write_b32 {vr(t4)}, {vr(O[1]+8)} offset:2048
        s_lshl_b32 s55, s{S_WAVE}, 2
        s_add_u32 s55, s55, {L_CNT + C_PA}
        v_mov_b32 {vr(t1)}, s55
        v_mov_b32 {vr(t4)}, 1
        s_waitcnt lgkmcnt(0)
        ds_write_b32 {vr(t1)}, {vr(t4)}
        s_lshl_b32 s55, s56, 2
        s_add_u32 s55, s55, {L_CNT + C_PA}
        v_mov_b32 {vr(t1)}, s55""")
        self.lds_wait_ge(t1, 1, t4, sleep=0)
        a(f"""ds_read_b128 {vr(S[0],4)}, {vr(t2)}
        ds_read_b128 {vr(S[0]+4,4)}, {vr(t2)} offset:1024
        v_add_u32 {vr(t2)}, {vr(t2)}, {vr(t3)}
        ds_read_b32 {vr(S[0]+8)}, {vr(t2)} offset:2048
        s_waitcnt lgkmcnt(0)""")
        for r in range(9): a(f"v_add_f32 {vr(O[0]+r)}, {vr(O[0]+r)}, {vr(S[0]+r)}")
        a(f"v_add_f32 {vr(t1)}, abs({vr(O[0])}), abs({vr(O[0]+1)})")
        for r in range(2, 8): a(f"v_add_f32 {vr(t1)}, {vr(t1)}, abs({vr(O[0]+r)})")
        a(f"""s_mov_b32 s61, {f32bits(2.0**100)}
        s_mov_b32 s62, {f32bits(2.0**-60)}
        s_mov_b32 s63, {f32bits(2.0**60)}
        v_cmp_nlt_f32 s[64:65], {vr(t1)}, s61
        v_cmp_ngt_f32 s[66:67], {vr(O[0]+8)}, s62
        v_cmp_nlt_f32 vcc, {vr(O[0]+8)}, s63
        s_or_b64 s[64:65], s[64:65], s[66:67]
        s_or_b64 vcc, vcc, s[64:65]
        s_cbranch_vccnz L_slow""")
        a.label("L_norm")
        a(f"""v_cvt_pk_bf16_f32 {vr(gq)}, {vr(gq)}, {vr(gq)}
        v_rcp_f32 {vr(t1)}, {vr(O[0]+8)}
        v_and_b32 {vr(gq)}, 0xffff0000, {vr(gq)}
        v_mul_f32 {vr(t1)}, {vr(t1)}, {vr(gq)}""")
        for r in range(8): a(f"v_mul_f32 {vr(O[0]+r)}, {vr(O[0]+r)}, {vr(t1)}")
        for i in range(4): a(f"v_cvt_pk_bf16_f32 {vr(S[1]+i)}, {vr(O[0]+2*i)}, {vr(O[0]+2*i+1)}")
        a(f"""s_lshl_b32 s55, s{S_TB}, 1
        s_add_u32 s55, s55, s52
        s_lshl_b32 s55, s55, 5
        s_lshl_b32 s56, s{S_CG}, 2
        s_add_u32 s55, s55, s56
        s_add_u32 s55, s55, s51
        s_lshl_b32 s55, s55, 10
        s_add_u32 s55, s55, {WS_O}
        buffer_store_dwordx4 {vr(S[1],4)}, {vr(vK)}, {srd(R_WS)}, s55 offen sc1""")
        self.arrive_publish(C_O, 8, F_O, t1, t2)
        self.stamp(6)
        a("s_endpgm")
        a.label("L_slow")
        a(f"s_waitcnt vmcnt(0)\nv_mov_b32 {vr(t1)}, 0xff800000\ns_mov_b32 s54, 0")
        a.label("L_slow1")
        a(f"""s_add_u32 s56, s57, s54
        buffer_load_dwordx4 {vr(KV[0],4)}, {vr(vK)}, {srd(R_WS)}, s56 offen sc1
        s_waitcnt vmcnt(0)
        v_mfma_f32_32x32x16_bf16 {vr(S[0],16)}, {vr(KV[0],4)}, {vr(q[0],4)}, 0
        s_nop 15""")
        for r in range(0, 16, 2): a(f"v_max3_f32 {vr(t1)}, {vr(S[0]+r)}, {vr(S[0]+r+1)}, {vr(t1)}")
        a(f"""s_add_u32 s54, s54, 2048
        s_cmp_lt_u32 s54, 131072
        s_cbranch_scc1 L_slow1
        v_mov_b32 {vr(t2)}, {vr(t1)}
        s_nop 1
        v_permlane32_swap_b32 {vr(t1)}, {vr(t2)}
        s_nop 1
        v_max_f32 {vr(t1)}, {vr(t1)}, {vr(t2)}
        v_sub_f32 {vr(t1)}, 0, {vr(t1)}""")
        for r in range(16): a(f"v_mov_b32 {vr(M+r)}, {vr(t1)}\nv_mov_b32 {vr(O[0]+r)}, 0")
        a("s_mov_b32 s54, 0")
        a.label("L_slow2")
        a(f"""s_add_u32 s56, s57, s54
        buffer_load_dwordx4 {vr(KV[0],4)}, {vr(vK)}, {srd(R_WS)}, s56 offen sc1
        s_mov_b64 exec, s[58:59]
        buffer_load_dwordx4 {vr(KV[0]+4,4)}, {vr(vV)}, {srd(R_WS)}, s56 offen offset:1024 sc1
        buffer_load_dwordx4 {vr(KV[0]+8,4)}, {vr(vV)}, {srd(R_WS)}, s56 offen offset:1536 sc1
        s_mov_b64 exec, -1
        s_waitcnt vmcnt(0)
        v_mfma_f32_32x32x16_bf16 {vr(S[0],16)}, {vr(KV[0],4)}, {vr(q[0],4)}, {vr(M,16)}
        s_nop 15""")
        ex(0, 0, 16)
        a("s_nop 1")
        smf(0, KV[0]+4, 0, 0)
        smf(0, KV[0]+8, 0, 1)
        a(f"""s_add_u32 s54, s54, 2048
        s_cmp_lt_u32 s54, 131072
        s_cbranch_scc1 L_slow2
        s_nop 15
        s_branch L_norm""")

    def swave(self):
        a = self.a
        a.label("L_swave")
        R = Regs(1, NVGPR)
        j, h, t1, t2, t3, t4, row = [R.alloc(1) for _ in range(7)]
        lr, li, cr, ci = [R.alloc(1) for _ in range(4)]
        l16r, l16i, mur, mui, m2r, m2i = [R.alloc(1) for _ in range(6)]
        dsk = R.alloc(1)
        xa = R.alloc(4); blo = R.alloc(4); bhi = R.alloc(4)
        assert R.n <= 32
        acc = [32, 48]
        PM = 64
        bu = [80, 96]
        BUF = 112
        PB = [32, 112]
        AF, BF = 64, 128
        a(f"""s_and_b32 s51, s{S_WAVE}, 1
        s_bfe_u32 s52, s{S_WAVE}, 0x10001
        s_load_dwordx2 s[{R_C}:{R_C+1}], s[0:1], 40
        s_load_dwordx2 s[60:61], s[0:1], 48
        s_load_dwordx2 s[62:63], s[0:1], 8
        s_load_dwordx2 s[64:65], s[0:1], 16
        s_load_dwordx2 s[66:67], s[0:1], 56
        s_load_dwordx2 s[68:69], s[0:1], 64
        s_load_dwordx2 s[70:71], s[0:1], 96
        v_and_b32 {vr(j)}, 31, v0
        v_lshrrev_b32 {vr(h)}, 5, v0
        s_mov_b32 s{R_C+2}, {512*512*2}
        s_mov_b32 s{R_C+3}, 0x20000
        s_mov_b32 s{R_T+2}, 1024
        s_mov_b32 s{R_T+3}, 0x20000""")
        self.swap23(row, j, t1)
        a(f"""s_lshl_b32 s53, s{S_CG}, 6
        s_lshl_b32 s54, s52, 5
        s_add_u32 s53, s53, s54
        v_add_u32 {vr(t3)}, s53, {vr(row)}
        v_lshlrev_b32 {vr(t3)}, 1, {vr(t3)}
        v_add_u32 {vr(t4)}, s53, {vr(j)}
        v_lshlrev_b32 {vr(t4)}, 1, {vr(t4)}
        s_waitcnt lgkmcnt(0)
        s_cmp_eq_u32 s52, 0
        s_cselect_b32 s{R_C}, s{R_C}, s60
        s_cselect_b32 s{R_C+1}, s{R_C+1}, s61""")
        self.load_nonce()
        for (sp, dst, off) in ((62, lr, t3), (64, li, t3), (66, cr, t3), (68, dsk, t4)):
            a(f"""s_mov_b32 s{R_T}, s{sp}
            s_mov_b32 s{R_T+1}, s{sp+1}
            buffer_load_ushort {vr(dst)}, {vr(off)}, {srd(R_T)}, 0 offen""")
        a(f"""s_mov_b32 s{R_T}, s70
        s_mov_b32 s{R_T+1}, s71
        v_lshlrev_b32 {vr(t3)}, 4, v0
        buffer_load_dwordx4 {vr(BUF,4)}, {vr(t3)}, {srd(R_T)}, 0 offen""")
        a(f"""s_lshl_b32 s53, s{S_CG}, 1
        s_add_u32 s53, s53, s52
        s_lshl_b32 s53, s53, 14
        s_add_u32 s53, s53, {WS_E}
        s_add_u32 s{R_E}, s{R_WS}, s53
        s_addc_u32 s{R_E+1}, s{R_WS+1}, 0
        s_mov_b32 s{R_E+2}, 16384
        s_mov_b32 s{R_E+3}, 0x20000""")
        a(f"""v_lshlrev_b32 {vr(t1)}, 2, v0
        v_add_u32 {vr(t1)}, {L_CNT}, {vr(t1)}
        v_mov_b32 {vr(t2)}, 0
        ds_write_b32 {vr(t1)}, {vr(t2)}""")
        a(f"s_lshl_b32 s54, s52, 5\nv_add_u32 {vr(row)}, s54, {vr(row)}")
        self.rowfrag_addrs(blo, row, h, t1, t2, 65536)
        for ks in range(4): a(f"v_add_u32 {vr(bhi+ks)}, 65536, {vr(blo+ks)}")
        self.tau(row, j, t1)
        a(f"s_lshl_b32 s54, s51, 5\nv_add_u32 {vr(row)}, s54, {vr(row)}")
        self.rowfrag_addrs(xa, row, h, t1, t2, L_X)
        for r in range(16):
            a(f"v_mov_b32 {vr(bu[0]+r)}, 0\nv_mov_b32 {vr(bu[1]+r)}, 0")
        a("s_waitcnt lgkmcnt(0)")
        self.fix_nonce()
        a("s_barrier\ns_barrier")
        a("s_barrier")
        a(f"""s_waitcnt vmcnt(0)
        v_lshlrev_b32 {vr(t3)}, 4, v0
        v_add_u32 {vr(t3)}, {L_GW}, {vr(t3)}
        ds_write_b128 {vr(t3)}, {vr(BUF,4)}
        v_lshlrev_b32 {vr(lr)}, 16, {vr(lr)}
        v_lshlrev_b32 {vr(li)}, 16, {vr(li)}
        v_lshlrev_b32 {vr(cr)}, 16, {vr(cr)}
        v_lshlrev_b32 {vr(dsk)}, 16, {vr(dsk)}
        v_mul_f32 {vr(cr)}, {f32bits(LOG2E)}, {vr(cr)}
        v_exp_f32 {vr(cr)}, {vr(cr)}
        s_nop 0
        v_cvt_pk_bf16_f32 {vr(cr)}, {vr(cr)}, {vr(cr)}
        v_and_b32 {vr(cr)}, 0xffff0000, {vr(cr)}
        v_mul_f32 {vr(t1)}, {vr(cr)}, {vr(lr)}
        v_mul_f32 {vr(t2)}, {vr(cr)}, {vr(li)}
        v_mul_f32 {vr(t1)}, {f32bits(LOG2E)}, {vr(t1)}
        v_exp_f32 {vr(t1)}, {vr(t1)}
        v_mul_f32 {vr(t2)}, {f32bits(1.0/(2*math.pi))}, {vr(t2)}
        v_rndne_f32 {vr(t3)}, {vr(t2)}
        v_sub_f32 {vr(t2)}, {vr(t2)}, {vr(t3)}
        v_cos_f32 {vr(t3)}, {vr(t2)}
        v_sin_f32 {vr(t4)}, {vr(t2)}
        v_mul_f32 {vr(mur)}, {vr(lr)}, {vr(lr)}
        v_fmac_f32 {vr(mur)}, {vr(li)}, {vr(li)}
        v_rcp_f32 {vr(mur)}, {vr(mur)}
        v_mul_f32 {vr(t3)}, {vr(t1)}, {vr(t3)}
        v_mul_f32 {vr(t4)}, {vr(t1)}, {vr(t4)}
        v_add_f32 {vr(mur)}, {vr(mur)}, {vr(mur)}
        v_add_f32 {vr(t1)}, -1.0, {vr(t3)}
        v_mul_f32 {vr(cr)}, {vr(t1)}, {vr(lr)}
        v_fmac_f32 {vr(cr)}, {vr(t4)}, {vr(li)}
        v_mul_f32 {vr(ci)}, {vr(t4)}, {vr(lr)}
        v_fma_f32 {vr(ci)}, -{vr(t1)}, {vr(li)}, {vr(ci)}
        v_mul_f32 {vr(cr)}, {vr(cr)}, {vr(mur)}
        v_mul_f32 {vr(ci)}, {vr(ci)}, {vr(mur)}
        v_mov_b32 {vr(lr)}, {vr(t3)}
        v_mov_b32 {vr(li)}, {vr(t4)}""")
        def csq(dr, di, sr, si):
            a(f"""v_mul_f32 {vr(t1)}, {vr(si)}, {vr(si)}
            v_mul_f32 {vr(t2)}, {vr(sr)}, {vr(si)}
            v_fma_f32 {vr(dr)}, {vr(sr)}, {vr(sr)}, -{vr(t1)}
            v_add_f32 {vr(di)}, {vr(t2)}, {vr(t2)}""")
        a("s_waitcnt lgkmcnt(0)\ns_barrier")
        csq(l16r, l16i, lr, li)
        for _ in range(3): csq(l16r, l16i, l16r, l16i)
        csq(mur, mui, l16r, l16i)
        csq(m2r, m2i, mur, mui)
        a("s_barrier\ns_barrier\ns_barrier\ns_barrier")
        def bref(base, ks):
            if base < 131072: return blo + ks, base - 65536
            return bhi + ks, base - 131072
        def breads(s):
            t = []
            b = PB[s & 1]
            for ks in range(4):
                t.append(f"ds_read_b128 {vr(b+12*ks,4)}, {vr(xa+ks)} offset:{(s-8)*8192}")
                for p in range(2):
                    rr, oo = bref(self.slot_base(("B", p, s-8)), ks)
                    t.append(f"ds_read_b128 {vr(b+12*ks+4+4*p,4)}, {vr(rr)} offset:{oo}")
            return t
        def bmf(s):
            t = []
            b = PB[s & 1]
            for ks in range(4):
                for p in range(2):
                    t.append(f"v_mfma_f32_32x32x16_bf16 {vr(bu[p],16)}, {vr(b+12*ks,4)}, {vr(b+12*ks+4+4*p,4)}, {vr(bu[p],16)}")
            return t
        for s in range(8, 16):
            a("s_barrier")
            rd = breads(s); mm = bmf(s-1) if s > 8 else []
            k = 0
            for i in range(12):
                a(rd[i])
                if mm and i % 3 != 0: a(mm[k]); k += 1
            a("s_waitcnt lgkmcnt(0)")
        for x in bmf(15): a(x)
        a(f"""v_bfe_u32 {vr(t1)}, {vr(j)}, 2, 1
        v_xor_b32 {vr(t1)}, {vr(t1)}, {vr(h)}
        v_lshlrev_b32 {vr(t1)}, 3, {vr(t1)}
        v_bfe_u32 {vr(t2)}, {vr(j)}, 4, 1
        v_lshl_add_u32 {vr(t1)}, {vr(t2)}, 2, {vr(t1)}
        v_bfe_u32 {vr(t2)}, {vr(j)}, 3, 1
        v_lshl_add_u32 {vr(t1)}, {vr(t2)}, 1, {vr(t1)}
        v_bfe_u32 {vr(t2)}, {vr(j)}, 1, 1
        v_add_u32 {vr(t1)}, {vr(t1)}, {vr(t2)}
        v_and_b32 {vr(t2)}, 1, {vr(j)}
        v_lshlrev_b32 {vr(t2)}, 4, {vr(t2)}
        v_mov_b32 {vr(t3)}, 0x3f80
        v_lshlrev_b32 {vr(t2)}, {vr(t2)}, {vr(t3)}""")
        for i in range(8):
            a(f"v_cmp_eq_u32 vcc, {i}, {vr(t1)}\ns_nop 1\nv_cndmask_b32 {vr(PM+i)}, 0, {vr(t2)}, vcc")
        a(f"""s_lshl_b32 s53, s{S_CG}, 13
        s_lshl_b32 s54, s51, 12
        s_add_u32 s53, s53, s54
        s_lshl_b32 s54, s52, 6
        s_add_u32 s53, s53, s54
        v_lshlrev_b32 {vr(t1)}, 11, {vr(h)}
        v_lshrrev_b32 {vr(t2)}, 3, {vr(j)}
        v_lshl_add_u32 {vr(t1)}, {vr(t2)}, 4, {vr(t1)}
        v_and_b32 {vr(t2)}, 7, {vr(j)}
        v_lshl_add_u32 {vr(t1)}, {vr(t2)}, 1, {vr(t1)}
        v_add_u32 {vr(t1)}, s53, {vr(t1)}""")
        for r in range(16):
            if r % 2 == 0: a(f"v_xor_b32 {vr(t2)}, {(r>>1)<<4}, {vr(t1)}")
            a(f"ds_read_u16 {vr(acc[0]+r)}, {vr(t2)} offset:{r*128}")
        a("s_waitcnt lgkmcnt(0)\ns_barrier")
        if self.stop == "A":
            a(f"""s_lshl_b32 s53, s{S_WG}, 2
            s_and_b32 s54, s{S_WAVE}, 3
            s_add_u32 s53, s53, s54
            s_mul_i32 s53, s53, {64*4*40}
            s_add_u32 s53, s53, {WS_DBG}
            v_lshlrev_b32 {vr(t1)}, 2, v0
            s_nop 7""")
            regs = [bu[0]+r for r in range(16)] + [bu[1]+r for r in range(16)] + [lr, li, cr, ci, l16r, l16i, m2r, m2i]
            for i, rg in enumerate(regs):
                a(f"s_add_u32 s54, s53, {i*256}\nbuffer_store_dword {vr(rg)}, {vr(t1)}, {srd(R_WS)}, s54 offen")
            a(f"""s_lshl_b32 s53, s{S_WG}, 14
            s_add_u32 s53, s53, {WS_DBG + 0xC00000}
            v_lshlrev_b32 {vr(t1)}, 4, v0
            v_add_u32 {vr(t2)}, {L_Q}, {vr(t1)}""")
            for i in range(8):
                a(f"ds_read_b128 {vr(BUF,4)}, {vr(t2)} offset:{i*1024}\ns_waitcnt lgkmcnt(0)\ns_add_u32 s54, s53, {i*1024}\nbuffer_store_dwordx4 {vr(BUF,4)}, {vr(t1)}, {srd(R_WS)}, s54 offen\ns_waitcnt vmcnt(0)")
            a(f"""v_lshlrev_b32 {vr(t1)}, 2, v0
            v_add_u32 {vr(t2)}, {L_G}, {vr(t1)}
            ds_read_b32 {vr(BUF)}, {vr(t2)}
            s_waitcnt lgkmcnt(0)
            s_add_u32 s54, s53, 8192
            buffer_store_dword {vr(BUF)}, {vr(t1)}, {srd(R_WS)}, s54 offen
            s_endpgm""")
            return
        a("s_setprio 2")
        self.stamp(1)
        G = BUF
        er, ei, e0r, e0i = BUF+16, BUF+17, BUF+18, BUF+19
        a(f"""s_lshl_b32 s53, s51, 7
        s_add_u32 s53, s53, {L_G}
        v_lshlrev_b32 {vr(t1)}, 6, {vr(h)}
        v_add_u32 {vr(t1)}, s53, {vr(t1)}""")
        for i in range(4): a(f"ds_read_b128 {vr(G+4*i,4)}, {vr(t1)} offset:{16*i}")
        a(f"v_mov_b32 {vr(er)}, {vr(bu[0])}\nv_mov_b32 {vr(ei)}, {vr(bu[1])}")
        def step(zr, zi, pr, pi_, br, bi):
            a(f"""v_fma_f32 {vr(t1)}, {vr(lr)}, {vr(pr)}, {vr(br)}
            v_fma_f32 {vr(t2)}, {vr(lr)}, {vr(pi_)}, {vr(bi)}
            v_fma_f32 {vr(t1)}, -{vr(li)}, {vr(pi_)}, {vr(t1)}
            v_fma_f32 {vr(zi)}, {vr(li)}, {vr(pr)}, {vr(t2)}
            v_mov_b32 {vr(zr)}, {vr(t1)}""")
        def step2(zr, zi, pr, pi_, br, bi, ar=None, ai=None):
            ar = lr if ar is None else ar; ai = li if ai is None else ai
            a(f"""v_fma_f32 {vr(zr)}, {vr(ar)}, {vr(pr)}, {vr(br)}
            v_fma_f32 {vr(zi)}, {vr(ar)}, {vr(pi_)}, {vr(bi)}
            v_fma_f32 {vr(zr)}, -{vr(ai)}, {vr(pi_)}, {vr(zr)}
            v_fma_f32 {vr(zi)}, {vr(ai)}, {vr(pr)}, {vr(zi)}""")
        cur = (er, ei); oth = (e0r, e0i)
        for r in range(1, 16):
            step2(oth[0], oth[1], cur[0], cur[1], bu[0]+r, bu[1]+r)
            cur, oth = oth, cur
        a0r, a0i, a1r, a1i = BUF+20, BUF+21, BUF+22, BUF+23
        a(f"""v_mov_b32 {vr(a0r)}, {vr(cur[0])}
        v_mov_b32 {vr(a1r)}, {vr(cur[0])}
        v_mov_b32 {vr(a0i)}, {vr(cur[1])}
        v_mov_b32 {vr(a1i)}, {vr(cur[1])}
        s_nop 1
        v_permlane32_swap_b32 {vr(a0r)}, {vr(a1r)}
        v_permlane32_swap_b32 {vr(a0i)}, {vr(a1i)}
        s_nop 1""")
        Er, Ei = BUF+24, BUF+25
        step2(Er, Ei, a0r, a0i, a1r, a1i, l16r, l16i)
        a(f"""s_lshl_b32 s53, s{S_TB}, 1
        s_add_u32 s53, s53, s51
        s_lshl_b32 s54, s53, 8
        v_lshlrev_b32 {vr(t1)}, 3, {vr(j)}
        s_mov_b32 exec_hi, 0
        buffer_store_dwordx2 {vr(Er,2)}, {vr(t1)}, {srd(R_E)}, s54 offen sc1
        s_mov_b64 exec, -1""")
        a("s_waitcnt lgkmcnt(0)")
        for r in range(16):
            a(f"""v_lshlrev_b32 {vr(acc[0]+r)}, 16, {vr(acc[0]+r)}
            v_mul_f32 {vr(acc[0]+r)}, {vr(acc[0]+r)}, {vr(dsk)}
            v_mul_f32 {vr(acc[0]+r)}, {vr(acc[0]+r)}, {vr(G+r)}""")
        self.arrive_publish(C_E, 4, F_E, t1, t2)
        vR0, vR1, vW = BUF+26, BUF+27, BUF+28
        a(f"s_lshl_b32 s55, s51, 1")
        self.dma_offsets(vR0, vR1, vW, "s55", 1024, t1, t2, t3)
        a(f"""s_lshl_b32 s56, s{S_CG}, 16
        s_lshl_b32 s57, s52, 16
        s_lshl_b32 s58, s51, 12
        s_add_u32 s57, s57, s58""")
        for kc in range(8):
            for i in range(4):
                a(f"s_add_u32 m0, s57, {L_C + kc*8192 + i*1024}\ns_add_u32 s58, s56, {kc*128 + (i>>1)*16384}")
                a(f"buffer_load_dwordx4 {vr(vR0 + (i&1))}, {srd(R_C)}, s58 offen lds")
        self.stamp(2)
        a(f"s_add_u32 s59, s{S_TB}, 1")
        self.poll(F_E, "tb", "s59", t1, t2, sleep=4)
        self.stamp(3)
        LB = BUF + 32
        hr, hi_ = BUF+30, BUF+31
        a(f"""s_sub_u32 s54, s53, 63
        s_lshl_b32 s54, s54, 8
        v_lshlrev_b32 {vr(t3)}, 3, {vr(j)}
        v_lshlrev_b32 {vr(t4)}, 8, {vr(h)}
        v_sub_u32 {vr(t3)}, {vr(t3)}, {vr(t4)}
        v_add_u32 {vr(t3)}, s54, {vr(t3)}""")
        def lbreg(i):
            k = i % 16
            return LB + 2*k if k < 8 else acc[1] + 2*(k-8)
        def lbload(i):
            a(f"buffer_load_dwordx2 {vr(lbreg(i),2)}, {vr(t3)}, {srd(R_E)}, 0 offen sc1")
            if i < 31: a(f"v_add_u32 {vr(t3)}, 512, {vr(t3)}")
        for i in range(16): lbload(i)
        a(f"v_mov_b32 {vr(hr)}, 0\nv_mov_b32 {vr(hi_)}, 0")
        cur = (hr, hi_); free = [(er, ei), (hr, hi_)]
        for i in range(32):
            a(f"s_waitcnt vmcnt({15 if i < 16 else 31-i})")
            d = free[i & 1]
            step2(d[0], d[1], cur[0], cur[1], lbreg(i), lbreg(i)+1, m2r, m2i)
            cur = d
            if i + 16 < 32: lbload(i + 16)
        for r in range(16): a(f"v_mov_b32 {vr(acc[1]+r)}, 0")
        b0r, b0i, b1r, b1i = LB, LB+1, LB+2, LB+3
        a(f"""v_mov_b32 {vr(b0r)}, {vr(cur[0])}
        v_mov_b32 {vr(b1r)}, {vr(cur[0])}
        v_mov_b32 {vr(b0i)}, {vr(cur[1])}
        v_mov_b32 {vr(b1i)}, {vr(cur[1])}
        s_nop 1
        v_permlane32_swap_b32 {vr(b0r)}, {vr(b1r)}
        v_permlane32_swap_b32 {vr(b0i)}, {vr(b1i)}
        s_nop 1""")
        Hr, Hi, H1r, H1i = LB+4, LB+5, LB+6, LB+7
        step2(Hr, Hi, b1r, b1i, b0r, b0i, mur, mui)
        step2(H1r, H1i, Hr, Hi, a0r, a0i, l16r, l16i)
        a(f"""s_mov_b32 exec_lo, 0
        v_mov_b32 {vr(Hr)}, {vr(H1r)}
        v_mov_b32 {vr(Hi)}, {vr(H1i)}
        s_mov_b32 exec_lo, -1""")
        pr, pi_ = Hr, Hi
        for r in range(16):
            a(f"""v_fmac_f32 {vr(bu[0]+r)}, {vr(lr)}, {vr(pr)}
            v_fmac_f32 {vr(bu[1]+r)}, {vr(lr)}, {vr(pi_)}
            v_fma_f32 {vr(bu[0]+r)}, -{vr(li)}, {vr(pi_)}, {vr(bu[0]+r)}
            v_fmac_f32 {vr(bu[1]+r)}, {vr(li)}, {vr(pr)}""")
            pr, pi_ = bu[0]+r, bu[1]+r
        for r in range(16):
            a(f"""v_mul_f32 {vr(t1)}, {vr(cr)}, {vr(G+r)}
            v_mul_f32 {vr(t2)}, {vr(ci)}, {vr(G+r)}
            v_mul_f32 {vr(t3)}, {vr(t1)}, {vr(bu[0]+r)}
            v_mul_f32 {vr(t4)}, -{vr(t2)}, {vr(bu[0]+r)}
            v_fma_f32 {vr(bu[0]+r)}, -{vr(t2)}, {vr(bu[1]+r)}, {vr(t3)}
            v_fma_f32 {vr(bu[1]+r)}, -{vr(t1)}, {vr(bu[1]+r)}, {vr(t4)}""")
        PKZ = G
        for i in range(16): a(f"v_cvt_pk_bf16_f32 {vr(PKZ+i)}, {vr(bu[0]+2*i)}, {vr(bu[0]+2*i+1)}")
        a("s_nop 1")
        for p in range(2):
            a(f"v_mfma_f32_32x32x16_bf16 {vr(bu[p],16)}, {vr(PKZ+8*p,4)}, {vr(PM,4)}, 0")
            a(f"v_mfma_f32_32x32x16_bf16 {vr(bu[p],16)}, {vr(PKZ+8*p+4,4)}, {vr(PM+4,4)}, {vr(bu[p],16)}")
        a(f"""s_lshl_b32 s54, s53, 6
        s_lshl_b32 s55, s{S_CG}, 2
        s_add_u32 s54, s54, s55
        s_lshl_b32 s55, s52, 1
        s_add_u32 s54, s54, s55
        s_lshl_b32 s54, s54, 10
        s_add_u32 s54, s54, {WS_H}
        s_add_u32 s55, s54, 32768
        v_lshlrev_b32 {vr(t3)}, 4, v0
        s_nop 7""")
        for p in range(2):
            for g in range(2):
                d = PKZ + 8*p + 4*g
                for i in range(4):
                    a(f"v_cvt_pk_bf16_f32 {vr(d+i)}, {vr(bu[p]+8*g+2*i)}, {vr(bu[p]+8*g+2*i+1)}")
                a(f"buffer_store_dwordx4 {vr(d,4)}, {vr(t3)}, {srd(R_WS)}, {'s54' if p==0 else 's55'} offen offset:{g*1024} sc1")
        self.arrive_publish(C_H, 4, F_H, t1, t2)
        self.stamp(4)
        if self.stop == "H":
            a("s_endpgm"); return
        self.sbarrier(1, t1, t2)
        ca = blo
        a(f"s_lshl_b32 s55, s52, 16")
        self.rowfrag_addrs(ca, j, h, t1, t2, 0)
        a(f"s_lshl_b32 s56, s52, 12\ns_add_u32 s55, s55, s56")
        for ks in range(4):
            a(f"v_add_u32 {vr(ca+ks)}, s55, {vr(ca+ks)}\nv_xor_b32 {vr(bhi+ks)}, 4096, {vr(ca+ks)}")
        self.poll(F_H, "cg", "8", t1, t2, sleep=4)
        self.stamp(5)
        a(f"""s_lshl_b32 s54, s53, 1
        s_add_u32 s54, s54, s52
        s_lshl_b32 s54, s54, 15
        s_add_u32 s54, s54, {WS_H}""")
        def aload(i, slot):
            if i % 4 == 0 and i: a(f"s_add_u32 s54, s54, 4096")
            a(f"buffer_load_dwordx4 {vr(AF+4*slot,4)}, {vr(t3)}, {srd(R_WS)}, s54 offen offset:{(i%4)*1024} sc1")
        def cread(ks):
            b = BF + 8*(ks & 3)
            a(f"ds_read_b128 {vr(b,4)}, {vr(ca+(ks&3))} offset:{(ks>>2)*8192}")
            a(f"ds_read_b128 {vr(b+4,4)}, {vr(bhi+(ks&3))} offset:{(ks>>2)*8192}")
        for i in range(16): aload(i, i)
        cread(0); cread(1); cread(2)
        for ks in range(32):
            if ks + 3 < 32: cread(ks + 3)
            nl = min(3, 31 - ks) * 2
            nv = 15 if ks < 16 else 31 - ks
            a(f"s_waitcnt vmcnt({nv}) lgkmcnt({nl})")
            b = BF + 8*(ks & 3)
            a(f"v_mfma_f32_32x32x16_bf16 {vr(acc[0],16)}, {vr(AF+4*(ks%16),4)}, {vr(b,4)}, {vr(acc[0],16)}")
            a(f"v_mfma_f32_32x32x16_bf16 {vr(acc[1],16)}, {vr(AF+4*(ks%16),4)}, {vr(b+4,4)}, {vr(acc[1],16)}")
            if ks + 16 < 32: aload(ks + 16, ks)
        self.stamp(6)
        self.sbarrier(2, t1, t2)
        vR0, vR1, vW = 160, 161, 162
        a(f"s_and_b32 s55, s{S_WAVE}, 3")
        self.dma_offsets(vR0, vR1, vW, "s55", 1024, t1, t2, t4)
        a(f"s_lshl_b32 s56, s{S_CG}, 7\ns_lshl_b32 s57, s55, 11")
        for kc in range(8):
            for e in range(2):
                a(f"s_add_u32 m0, s57, {L_WO + kc*8192 + e*1024}\ns_add_u32 s58, s56, {kc*65536 + e*8192}")
                a(f"buffer_load_dwordx4 {vr(vW)}, {srd(R_WO)}, s58 offen lds")
        w0, w1 = blo, blo + 1
        self.tr_addr(w0, 0, "s52", 4, t1, t2, t4, L_WO)
        a(f"""s_lshl_b32 s55, s52, 15
        v_add_u32 {vr(w0)}, s55, {vr(w0)}
        v_xor_b32 {vr(w1)}, 64, {vr(w0)}
        s_waitcnt vmcnt(0)""")
        self.sbarrier(3, t1, t2)
        oa = blo + 2
        a(f"""s_lshl_b32 s55, s53, 16
        s_lshl_b32 s56, s{S_CG}, 8
        s_add_u32 s55, s55, s56
        s_lshl_b32 s56, s52, 7
        s_add_u32 s55, s55, s56
        v_lshlrev_b32 {vr(oa)}, 15, {vr(h)}
        v_lshl_add_u32 {vr(oa)}, {vr(j)}, 2, {vr(oa)}
        v_add_u32 {vr(oa)}, s55, {vr(oa)}
        s_lshl_b32 s54, s53, 1
        s_add_u32 s54, s54, s52
        s_lshl_b32 s54, s54, 14
        s_add_u32 s54, s54, {WS_O}""")
        def wread(hd):
            b = BF + 8*(hd & 3)
            for n, w in enumerate((w0, w1)):
                for t in range(2):
                    a(f"ds_read_b64_tr_b16 {vr(b+4*n+2*t,2)}, {vr(w)} offset:{(16*hd + 8*t)*128}")
        wread(0); wread(1); wread(2)
        self.stamp(7)
        self.poll(F_O, "cg", "8", t1, t2, sleep=1)
        self.stamp(8)
        for i in range(16): aload(i, i)
        for hd in range(16):
            if hd + 3 < 16: wread(hd + 3)
            nl = min(3, 15 - hd) * 4
            a(f"s_waitcnt vmcnt({15-hd}) lgkmcnt({nl})")
            b = BF + 8*(hd & 3)
            a(f"v_mfma_f32_32x32x16_bf16 {vr(acc[1],16)}, {vr(AF+4*hd,4)}, {vr(b+4,4)}, {vr(acc[1],16)}")
            a(f"v_mfma_f32_32x32x16_bf16 {vr(acc[0],16)}, {vr(AF+4*hd,4)}, {vr(b,4)}, {vr(acc[0],16)}")
        a(f"""s_and_b32 s55, s{S_WAVE}, 3
        s_lshl_b32 s56, s55, 12
        s_add_u32 s56, s56, {L_FX}
        v_add_u32 {vr(t1)}, s56, {vr(t3)}
        v_xor_b32 {vr(t2)}, 8192, {vr(t1)}
        s_lshl_b32 s56, s55, 2
        s_add_u32 s56, s56, {L_CNT + C_PS}
        v_mov_b32 {vr(t4)}, s56
        v_mov_b32 {vr(row)}, 1
        s_nop 7""")
        for i in range(4): a(f"ds_write_b128 {vr(t1)}, {vr(acc[1]+4*i,4)} offset:{i*1024}")
        a(f"""s_waitcnt lgkmcnt(0)
        ds_write_b32 {vr(t4)}, {vr(row)}
        v_xor_b32 {vr(t4)}, 8, {vr(t4)}""")
        self.lds_wait_ge(t4, 1, row, sleep=0)
        for i in range(4): a(f"ds_read_b128 {vr(AF+4*i,4)}, {vr(t2)} offset:{i*1024}")
        for r in range(16):
            if r % 4 == 0: a(f"s_waitcnt lgkmcnt({3 - r//4})")
            a(f"v_add_f32 {vr(acc[0]+r)}, {vr(acc[0]+r)}, {vr(AF+r)}")
            if r % 2 == 0 and r: a(f"v_add_u32 {vr(oa)}, 4096, {vr(oa)}")
            a(f"buffer_store_dword {vr(acc[0]+r)}, {vr(oa)}, {srd(R_OUT)}, 0 offen offset:{(r&1)*2048}")
        self.stamp(9)
        a(f"""s_or_b32 s55, s{S_TB}, s{S_CG}
        s_sub_u32 s56, s{S_WAVE}, 8
        s_or_b32 s55, s55, s56
        s_cmp_eq_u32 s55, 0
        s_cbranch_scc0 L_exit
        v_mov_b32 {vr(t1)}, 0
        v_mov_b32 {vr(t2)}, s{S_NONCE}
        s_mov_b64 exec, 1
        buffer_store_dword {vr(t2)}, {vr(t1)}, {srd(R_WS)}, 0 offen""")

    def build(self):
        self.prologue()
        self.loader()
        self.compute()
        self.attention()
        self.swave()
        self.a.label("L_exit")
        self.a("s_endpgm")
        ref = open(f"cdna_kernels/{NAME}.s.ref").read().split("\n")
        pre = "\n".join(l for l in ref if l.startswith(";") and "@launch" not in l)
        return self.a.text(pre)

if __name__ == "__main__":
    import argparse
    p = argparse.ArgumentParser()
    p.add_argument("-o", default=f"cdna_kernels/{NAME}.s")
    p.add_argument("--stop", default=None)
    p.add_argument("--stamps", action="store_true")
    p.add_argument("--pub", type=int, default=12)
    p.add_argument("--map", type=int, default=1)
    p.add_argument("--prio", type=int, default=24)
    o = p.parse_args()
    g = Gen(stop=o.stop, stamps=o.stamps, pub=o.pub, mapmode=o.map, prio_switch=o.prio)
    open(o.o, "w").write(g.build())
    print("wrote", o.o)
```

```python
import sys, math, struct
sys.path.insert(0, "bench")
from asmlib import Asm

NAME = "gated_mix__ssm_conv_s5__softmax_full_mha__prompt"

WS_FLAG = 0x1000
WS_E    = 0x40000
WS_KV   = 0x100000
WS_H    = 0x500000
WS_O    = 0x900000
WS_DBG  = 0xC00000
WS_SIZE = 0x2000000
F_KV, F_E, F_H, F_O = 0, 1, 2, 3

L_X    = 0
L_RING = 65536
NS     = 10
L_Q    = 147456
L_VR   = 131072
VRS    = 3072
L_MISC = 158 * 1024
L_GW   = L_MISC
L_G    = L_MISC + 1024
L_CNT  = L_MISC + 1024 + 256
C_E, C_H, C_O, C_SB, C_Q, C_KV, C_SENT, C_AD = 0, 4, 8, 12, 16, 20, 24, 28
C_PA   = 32
C_PS   = 64
C_BL   = 80
C_EX   = 96
L_EX   = 157 * 1024
LDS_BYTES = 160 * 1024
L_C    = 0
L_WO   = 0
L_FX   = 131072

def f32bits(x):
    return struct.unpack("<I", struct.pack("<f", x))[0]

QSCALE = 0.25 * math.log2(math.e)
LOG2E = math.log2(math.e)

class Regs:
    def __init__(self, start, limit):
        self.n = start; self.limit = limit; self.hi = start
    def alloc(self, cnt, align=1):
        self.n = (self.n + align - 1) // align * align
        r = self.n; self.n += cnt
        assert self.n <= self.limit, f"out of registers {self.n} > {self.limit}"
        self.hi = max(self.hi, self.n)
        return r
    def mark(self): return self.n
    def reset(self, m): self.n = m

def vr(r, n=1):
    return f"v{r}" if n == 1 else f"v[{r}:{r+n-1}]"

S_WG, S_WAVE, S_TB, S_CG, S_NONCE, S_ROT = 2, 3, 4, 5, 6, 7
R_X, R_W, R_WS, R_OUT, R_BRE, R_BIM, R_C, R_WO, R_T, R_E = 8, 12, 16, 20, 24, 28, 32, 36, 40, 44
def srd(r): return f"s[{r}:{r+3}]"
NVGPR = 168
SPIN_MAX = 200000

class Gen:
    def __init__(self, stop=None, stamps=False, pub=12, mapmode=1, prio_switch=27, exp='', win=8, look=3, D=6, hold=8):
        self.hold = hold
        self.D = D
        self.tag = 'notag' not in exp.split(',')
        self.look = look
        self.win = win
        self.exp = exp.split(',')
        self.a = Asm()
        self.stop = stop
        self.stamps = stamps
        self.pub = pub
        self.mapmode = mapmode
        self.prio_switch = prio_switch
        self.uid = 0
        self.role = ''
        self.dbgslot = {('c', 0): 0, ('c', 1): 1, ('l', 2): 2, ('a', 4): 3, ('a', 5): 4, ('s', 7): 5, ('s', 8): 6, ('s', 9): 7}
        self.stages = [[("W", 1, k), ("W", 2, k)] for k in range(8)]
        self.stages.append([("W", 0, 0), ("W", 0, 1)])
        for k in range(3):
            self.stages.append([("W", 0, 2+2*k), ("W", 0, 3+2*k), ("B", 0, k), ("B", 1, k)])
        for ks in ((3, 4), (5, 6), (7,)):
            self.stages.append([("B", p, k) for k in ks for p in range(2)])
        self.units = sum(self.stages, [])
        self.uidx = {u: i for i, u in enumerate(self.units)}

    def lbl(self, p):
        self.uid += 1
        return f"L{p}{self.uid}"
    def slot_base(self, u):
        return L_RING + (self.uidx[u] % NS) * 8192
    def echo(self, name):
        if ('echo_' + name) in self.exp:
            self.a("s_memrealtime s[98:99]\ns_waitcnt lgkmcnt(0)\ns_sub_u32 s98, s98, s96")
    def echo_end(self):
        if not any(e.startswith('echo_') for e in self.exp): return
        a = self.a
        a("s_waitcnt vmcnt(0)\ns_memrealtime s[94:95]\ns_waitcnt lgkmcnt(0)\ns_add_u32 s98, s98, s94")
        a.label("L_echo")
        a("s_memrealtime s[94:95]\ns_waitcnt lgkmcnt(0)\ns_sub_u32 s94, s94, s98\ns_cmp_lt_i32 s94, 0\ns_cbranch_scc1 L_echo")
    def stamp(self, idx):
        if not self.stamps: return
        a = self.a
        if 'dbgstamp' in self.exp:
            slot = self.dbgslot.get((self.role, idx))
            if slot is None: return
            L = self.lbl("st")
            wv = {'c': 0, 'l': 4, 'a': 0, 's': 8}[self.role]
            a(f"""s_memrealtime s[80:81]
            s_cmp_lg_u32 s{S_WAVE}, {wv}
            s_cbranch_scc1 {L}
            s_and_b32 s82, s{S_WG}, 127
            s_cmp_lg_u32 s82, 77
            s_cbranch_scc1 {L}
            s_load_dwordx2 s[88:89], s[0:1], 112
            s_lshr_b32 s82, s{S_WG}, 7
            s_lshl_b32 s82, s82, 5
            s_add_u32 s82, s82, {slot*4}
            s_mov_b32 s90, 256
            s_mov_b32 s91, 0x20000
            s_waitcnt lgkmcnt(0)
            s_sub_u32 s80, s80, s96
            v_mov_b32 v166, s80
            v_mov_b32 v167, s82
            s_mov_b64 s[84:85], exec
            s_mov_b64 exec, 1
            buffer_store_dword v166, v167, s[88:91], 0 offen
            s_mov_b64 exec, s[84:85]""")
            a.label(L)
            a("s_waitcnt lgkmcnt(0)")
            return
        a(f"""s_memrealtime s[94:95]
        s_waitcnt lgkmcnt(0)
        v_writelane_b32 v167, s94, {idx}""")
        if self.role == "a" and idx in (4, 5):
            a(f"""s_memtime s[94:95]
            s_waitcnt lgkmcnt(0)
            v_writelane_b32 v167, s94, {idx+16}""")
    def stamp_flush(self):
        if not self.stamps or 'dbgstamp' in self.exp: return
        self.a(f"""v_writelane_b32 v167, s96, 15
        s_lshl_b32 s82, s{S_WG}, 4
        s_add_u32 s82, s82, s{S_WAVE}
        s_lshl_b32 s82, s82, 8
        s_add_u32 s82, s82, {WS_DBG}
        v_lshlrev_b32 v166, 2, v0
        buffer_store_dword v167, v166, {srd(R_WS)}, s82 offen""")

    def prologue(self):
        a = self.a
        a.kernel(NAME + "_kernel", 256, 768, LDS_BYTES, NVGPR, sgpr=100)
        if self.stamps or any(e.startswith('echo_') for e in self.exp): a("s_memrealtime s[96:97]")
        a(f"""
        s_cmp_ge_u32 s{S_WG}, 256
        s_cbranch_scc1 L_exit
        s_load_dwordx2 s[{R_X}:{R_X+1}], s[0:1], 0
        s_load_dwordx2 s[{R_W}:{R_W+1}], s[0:1], 80
        s_load_dwordx2 s[{R_WS}:{R_WS+1}], s[0:1], 120
        s_load_dwordx2 s[{R_BRE}:{R_BRE+1}], s[0:1], 24
        s_load_dwordx2 s[{R_BIM}:{R_BIM+1}], s[0:1], 32
        s_load_dwordx2 s[{R_OUT}:{R_OUT+1}], s[0:1], 104
        s_load_dwordx2 s[{R_WO}:{R_WO+1}], s[0:1], 88
        """)
        if 'nopf' not in self.exp:
            a("s_getpc_b64 s[70:71]")
            a.label("L_pc")
            a(f"""v_lshlrev_b32 v2, 7, v0
            v_min_u32 v2, L_exit-L_pc, v2
            global_load_dword v165, v2, s[70:71]""")
        a(f"""
        v_lshrrev_b32 v1, 6, v0
        v_and_b32 v0, 63, v0
        s_mov_b32 s{R_X+2}, {2048*512*2}
        v_readfirstlane_b32 s{S_WAVE}, v1
        s_mov_b32 s{R_X+3}, 0x20000
        s_mov_b32 s{R_W+2}, {512*1536*2}
        s_mov_b32 s{R_W+3}, 0x20000
        s_mov_b32 s{R_WS+2}, {WS_SIZE}
        s_mov_b32 s{R_WS+3}, 0x20000
        s_mov_b32 s{R_BRE+2}, {512*512*2}
        s_mov_b32 s{R_BRE+3}, 0x20000
        s_mov_b32 s{R_BIM+2}, {512*512*2}
        s_mov_b32 s{R_BIM+3}, 0x20000
        s_mov_b32 s{R_OUT+2}, {2048*512*4}
        s_mov_b32 s{R_OUT+3}, 0x20000
        s_mov_b32 s{R_WO+2}, {512*512*2}
        s_mov_b32 s{R_WO+3}, 0x20000
        """)
        if self.mapmode == 0:
            a(f"s_and_b32 s{S_CG}, s{S_WG}, 7\ns_lshr_b32 s{S_TB}, s{S_WG}, 3")
        elif self.mapmode == 1:
            a(f"""s_and_b32 s48, s{S_WG}, 7
            s_lshr_b32 s49, s{S_WG}, 3
            s_lshr_b32 s{S_TB}, s48, 1
            s_lshl_b32 s{S_TB}, s{S_TB}, 3
            s_and_b32 s50, s49, 7
            s_add_u32 s{S_TB}, s{S_TB}, s50
            s_and_b32 s{S_CG}, s48, 1
            s_lshl_b32 s{S_CG}, s{S_CG}, 2
            s_lshr_b32 s50, s49, 3
            s_add_u32 s{S_CG}, s{S_CG}, s50""")
        elif self.mapmode == 2:
            a(f"""s_and_b32 s48, s{S_WG}, 7
            s_lshr_b32 s49, s{S_WG}, 3
            s_lshl_b32 s{S_TB}, s48, 2
            s_and_b32 s50, s49, 3
            s_add_u32 s{S_TB}, s{S_TB}, s50
            s_lshr_b32 s{S_CG}, s49, 2""")
        elif self.mapmode == 3:
            a(f"""s_and_b32 s48, s{S_WG}, 7
            s_lshr_b32 s49, s{S_WG}, 3
            s_lshr_b32 s{S_TB}, s48, 2
            s_lshl_b32 s{S_TB}, s{S_TB}, 4
            s_and_b32 s50, s49, 15
            s_add_u32 s{S_TB}, s{S_TB}, s50
            s_and_b32 s{S_CG}, s48, 3
            s_lshl_b32 s{S_CG}, s{S_CG}, 1
            s_lshr_b32 s50, s49, 4
            s_add_u32 s{S_CG}, s{S_CG}, s50""")
        a(f"""s_lshl_b32 s{S_ROT}, s{S_CG}, 1
        s_add_u32 s{S_ROT}, s{S_ROT}, s{S_TB}
        s_and_b32 s{S_ROT}, s{S_ROT}, {0 if 'norot' in self.exp else 7}""")
        a(f"""
        s_cmp_ge_u32 s{S_WAVE}, 8
        s_cbranch_scc1 L_swave
        s_cmp_ge_u32 s{S_WAVE}, 4
        s_cbranch_scc0 L_comp
        """)

    def prefetch(self, kind, t1, t2, dst):
        if 'nopf' in self.exp: return
        assert self.mapmode == 1
        a = self.a
        a(f"""s_lshr_b32 s72, s{S_WG}, 3
        s_and_b32 s73, s{S_TB}, 24
        s_and_b32 s74, s{S_CG}, 4""")
        if kind[0] == "x":
            a(f"""s_lshl_b32 s73, s73, 16
            s_lshl_b32 s72, s72, 14
            s_add_u32 s72, s72, s73
            s_add_u32 s72, s72, {kind[1]*8192}
            v_lshlrev_b32 {vr(t1)}, 7, v0
            buffer_load_dword {vr(dst)}, {vr(t1)}, {srd(R_X)}, s72 offen""")
        elif kind[0] == "col":
            _, r, stride, off = kind
            a(f"""s_mul_i32 s72, s72, {16*stride}
            s_lshl_b32 s74, s74, 7
            s_add_u32 s72, s72, s74
            s_add_u32 s72, s72, {off}
            v_lshrrev_b32 {vr(t1)}, 2, v0
            v_mul_u32_u24 {vr(t1)}, {stride}, {vr(t1)}
            v_and_b32 {vr(t2)}, 3, v0
            v_lshl_add_u32 {vr(t1)}, {vr(t2)}, 7, {vr(t1)}
            buffer_load_dword {vr(dst)}, {vr(t1)}, {srd(r)}, s72 offen""")
        else:
            _, r = kind
            a(f"""s_lshl_b32 s74, s74, 16
            s_lshl_b32 s72, s72, 13
            s_add_u32 s72, s72, s74
            v_lshlrev_b32 {vr(t1)}, 7, v0
            buffer_load_dword {vr(dst)}, {vr(t1)}, {srd(r)}, s72 offen""")
    def prefetch_by_wave(self, first, kinds, t1, t2, dst):
        if 'nopf' in self.exp: return
        a = self.a
        Le = self.lbl("pfe")
        for n, k in enumerate(kinds):
            L = self.lbl("pf")
            a(f"s_cmp_eq_u32 s{S_WAVE}, {first+n}\ns_cbranch_scc0 {L}")
            self.prefetch(k, t1, t2, dst)
            a(f"s_branch {Le}")
            a.label(L)
        a.label(Le)

    def load_nonce(self):
        self.a(f"s_load_dword s{S_NONCE}, s[{R_WS}:{R_WS+1}], 0")
    def fix_nonce(self):
        self.a(f"s_mul_i32 s{S_NONCE}, s{S_NONCE}, 0x9E3779B1\ns_add_u32 s{S_NONCE}, s{S_NONCE}, 0x7F4A7C15")

    def tau(self, dst, j, t1):
        a = self.a
        a(f"""v_and_b32 {vr(dst)}, 3, {vr(j)}
        v_lshrrev_b32 {vr(t1)}, 3, {vr(j)}
        v_lshl_add_u32 {vr(dst)}, {vr(t1)}, 2, {vr(dst)}
        v_and_b32 {vr(t1)}, 4, {vr(j)}
        v_lshl_add_u32 {vr(dst)}, {vr(t1)}, 2, {vr(dst)}""")
    def swap23(self, dst, j, t1):
        a = self.a
        a(f"""v_and_b32 {vr(dst)}, 0x13, {vr(j)}
        v_and_b32 {vr(t1)}, 4, {vr(j)}
        v_lshl_add_u32 {vr(dst)}, {vr(t1)}, 1, {vr(dst)}
        v_and_b32 {vr(t1)}, 8, {vr(j)}
        v_lshrrev_b32 {vr(t1)}, 1, {vr(t1)}
        v_add_u32 {vr(dst)}, {vr(dst)}, {vr(t1)}""")
    def rowfrag_addrs(self, dst4, row, h, t1, t2, base):
        a = self.a
        a(f"""v_lshrrev_b32 {vr(t1)}, 1, {vr(row)}
        v_and_b32 {vr(t1)}, 7, {vr(t1)}
        v_xor_b32 {vr(t1)}, {vr(t1)}, {vr(h)}
        v_lshlrev_b32 {vr(t1)}, 4, {vr(t1)}
        v_lshlrev_b32 {vr(t2)}, 7, {vr(row)}""")
        if base: a(f"v_add_u32 {vr(t2)}, {base}, {vr(t2)}")
        for ks in range(4):
            a(f"v_xor_b32 {vr(dst4+ks)}, {ks*32}, {vr(t1)}\nv_add_u32 {vr(dst4+ks)}, {vr(dst4+ks)}, {vr(t2)}")
    def tr_addr(self, dst, lane, ft_s, hmul, t1, t2, t3, base):
        a = self.a
        a(f"""v_bfe_u32 {vr(t1)}, {vr(lane)}, 2, 2
        v_lshrrev_b32 {vr(t2)}, 5, {vr(lane)}
        v_mul_u32_u24 {vr(t2)}, {hmul}, {vr(t2)}
        v_add_u32 {vr(t2)}, {vr(t2)}, {vr(t1)}
        v_lshlrev_b32 {vr(dst)}, 7, {vr(t2)}
        v_bfe_u32 {vr(t2)}, {vr(lane)}, 4, 1
        v_lshlrev_b32 {vr(t2)}, 1, {vr(t2)}
        v_bfe_u32 {vr(t3)}, {vr(lane)}, 1, 1
        v_add_u32 {vr(t2)}, {vr(t2)}, {vr(t3)}
        v_mov_b32 {vr(t3)}, {ft_s}
        v_lshl_add_u32 {vr(t2)}, {vr(t3)}, 2, {vr(t2)}
        v_lshrrev_b32 {vr(t1)}, 1, {vr(t1)}
        v_lshlrev_b32 {vr(t1)}, 2, {vr(t1)}
        v_xor_b32 {vr(t2)}, {vr(t2)}, {vr(t1)}
        v_lshl_add_u32 {vr(dst)}, {vr(t2)}, 4, {vr(dst)}
        v_and_b32 {vr(t1)}, 1, {vr(lane)}
        v_lshl_add_u32 {vr(dst)}, {vr(t1)}, 3, {vr(dst)}""")
        if base: a(f"v_add_u32 {vr(dst)}, {base}, {vr(dst)}")
    def dma_offsets(self, vR0, vR1, vW, lw_s, wstride, t1, t2, t3):
        a = self.a
        a(f"""v_lshrrev_b32 {vr(t1)}, 3, v0
        v_and_b32 {vr(t2)}, 7, v0
        s_lshl_b32 s48, {lw_s}, 4
        v_add_u32 {vr(t3)}, s48, {vr(t1)}
        v_lshlrev_b32 {vr(vR0)}, 10, {vr(t3)}
        v_mul_u32_u24 {vr(vW)}, {wstride}, {vr(t3)}
        v_lshrrev_b32 {vr(t1)}, 1, {vr(t1)}
        v_xor_b32 {vr(t3)}, {vr(t2)}, {vr(t1)}
        v_lshl_add_u32 {vr(vR0)}, {vr(t3)}, 4, {vr(vR0)}
        v_xor_b32 {vr(vR1)}, 64, {vr(vR0)}
        v_add_u32 {vr(vR1)}, 8192, {vr(vR1)}
        v_and_b32 {vr(t1)}, 1, {vr(t1)}
        v_lshlrev_b32 {vr(t1)}, 2, {vr(t1)}
        v_xor_b32 {vr(t3)}, {vr(t2)}, {vr(t1)}
        v_lshl_add_u32 {vr(vW)}, {vr(t3)}, 4, {vr(vW)}""")

    def flag_addr_s(self, dst, kind):
        self.a(f"""s_lshl_b32 s{dst}, s{S_TB}, 3
        s_add_u32 s{dst}, s{dst}, s{S_CG}
        s_lshl_b32 s{dst}, s{dst}, 7
        s_add_u32 s{dst}, s{dst}, {WS_FLAG + kind*256*128}""")
    def publish(self, kind, t1, t2):
        a = self.a
        self.flag_addr_s(48, kind)
        a(f"""v_mov_b32 {vr(t1)}, s48
        v_mov_b32 {vr(t2)}, s{S_NONCE}
        s_mov_b64 exec, 1
        buffer_store_dword {vr(t2)}, {vr(t1)}, {srd(R_WS)}, 0 offen sc1
        s_mov_b64 exec, -1""")
    def poll(self, kind, along, nl_s, t1, t2, sleep=2):
        a = self.a
        L = self.lbl("poll"); Lg = self.lbl("pollgo")
        if along == "tb":
            a(f"""s_lshl_b32 s48, s{S_CG}, 7
            s_add_u32 s48, s48, {WS_FLAG + kind*256*128}
            v_lshlrev_b32 {vr(t1)}, 10, v0""")
        else:
            a(f"""s_lshl_b32 s48, s{S_TB}, 10
            s_add_u32 s48, s48, {WS_FLAG + kind*256*128}
            v_lshlrev_b32 {vr(t1)}, 7, v0""")
        a(f"""v_add_u32 {vr(t1)}, s48, {vr(t1)}
        v_cmp_gt_u32 vcc, {nl_s}, v0
        s_mov_b32 s49, 0
        s_mov_b64 exec, vcc""")
        a.label(L)
        a(f"""buffer_load_dword {vr(t2)}, {vr(t1)}, {srd(R_WS)}, 0 offen sc1
        s_add_u32 s49, s49, 1
        s_waitcnt vmcnt(0)
        v_cmp_ne_u32 vcc, s{S_NONCE}, {vr(t2)}
        s_cmp_gt_u32 s49, {SPIN_MAX}
        s_cbranch_scc1 {Lg}
        s_cbranch_vccz {Lg}
        s_sleep {sleep}
        s_branch {L}""")
        a.label(Lg)
        a("s_mov_b64 exec, -1")
    def arrive_publish(self, cnt_off, n, kind, t1, t2):
        a = self.a
        L = self.lbl("arr")
        a(f"""s_waitcnt vmcnt(0)
        v_mov_b32 {vr(t1)}, {L_CNT + cnt_off}
        v_mov_b32 {vr(t2)}, 1
        s_mov_b64 exec, 1
        ds_add_rtn_u32 {vr(t2)}, {vr(t1)}, {vr(t2)}
        s_waitcnt lgkmcnt(0)
        s_mov_b64 exec, -1
        v_readfirstlane_b32 s49, {vr(t2)}
        s_cmp_eq_u32 s49, {n-1}
        s_cbranch_scc0 {L}""")
        self.publish(kind, t1, t2)
        a.label(L)
    def lds_wait_ge(self, addr_v, target, t2, sleep=1):
        a = self.a
        L = self.lbl("lw"); Lg = self.lbl("lwgo")
        a("s_mov_b32 s49, 0")
        a.label(L)
        a(f"""ds_read_b32 {vr(t2)}, {vr(addr_v)}
        s_add_u32 s49, s49, 1
        s_waitcnt lgkmcnt(0)
        v_readfirstlane_b32 s50, {vr(t2)}
        s_cmp_gt_u32 s49, {SPIN_MAX*8}
        s_cbranch_scc1 {Lg}
        s_cmp_ge_u32 s50, {target}
        s_cbranch_scc1 {Lg}
        s_sleep {sleep}
        s_branch {L}""")
        a.label(Lg)
    def sbarrier(self, k, t1, t2):
        a = self.a
        a(f"""s_waitcnt lgkmcnt(0)
        v_mov_b32 {vr(t1)}, {L_CNT + C_SB}
        v_mov_b32 {vr(t2)}, 1
        s_mov_b64 exec, 1
        ds_add_u32 {vr(t1)}, {vr(t2)}
        s_mov_b64 exec, -1""")
        self.lds_wait_ge(t1, 4*k, t2)

    def sentinel(self, t0):
        if not self.tag: return
        a = self.a
        a(f"""s_lshl_b32 s72, s{S_CG}, 2
        s_and_b32 s73, s{S_WAVE}, 3
        s_add_u32 s72, s72, s73
        s_lshl_b32 s73, s{S_TB}, 1
        s_lshr_b32 s74, s{S_WAVE}, 2
        s_add_u32 s73, s73, s74
        s_lshl_b32 s73, s73, 5
        s_add_u32 s72, s72, s73
        s_lshl_b32 s72, s72, 10
        s_add_u32 s72, s72, {WS_O}
        v_lshlrev_b32 {vr(t0+4)}, 4, v0""")
        for i in range(4): a(f"v_mov_b32 {vr(t0+i)}, -1")
        a(f"buffer_store_dwordx4 {vr(t0,4)}, {vr(t0+4)}, {srd(R_WS)}, s72 offen sc1")
    def lds_signal(self, off, t1, t2, add=True, val=1):
        a = self.a
        a(f"""v_mov_b32 {vr(t1)}, {off}
        v_mov_b32 {vr(t2)}, {val}
        s_mov_b64 exec, 1
        {'ds_add_u32' if add else 'ds_write_b32'} {vr(t1)}, {vr(t2)}
        s_mov_b64 exec, -1""")

    def loader(self):
        a = self.a
        a.label("L_load")
        self.role = "l"
        vR0, vR1, vW, t1, t2, t3 = 1, 2, 3, 4, 5, 6
        a(f"s_sub_u32 s51, s{S_WAVE}, 4")
        self.dma_offsets(vR0, vR1, vW, "s51", 3072, t1, t2, t3)
        a(f"""s_lshl_b32 s52, s{S_TB}, 16
        s_lshl_b32 s53, s{S_CG}, 16
        s_lshl_b32 s54, s{S_CG}, 7
        s_lshl_b32 s55, s51, 11""")
        for k in range(8):
            a(f"s_add_u32 s{60+k}, s{S_ROT}, {k}\ns_and_b32 s{60+k}, s{60+k}, 7\ns_lshl_b32 s{60+k}, s{60+k}, 7")
        a("s_waitcnt lgkmcnt(0)")
        self.stamp(3)
        issued = []
        def issue(u):
            if u[0] == "x":
                base = L_X + u[1] * 8192
                a(f"s_add_u32 s56, s52, s{60+u[1]}")
                for e in range(2):
                    a(f"s_add_u32 m0, s55, {base + e*1024}\ns_nop 0")
                    a(f"buffer_load_dwordx4 {vr(vR0+e)}, {srd(R_X)}, s56 offen lds")
                    issued.append(u)
            elif u[0] == "W":
                base = self.slot_base(u)
                a(f"s_mul_i32 s57, s{60+u[2]}, 1536\ns_add_u32 s57, s57, s54")
                for e in range(2):
                    a(f"s_add_u32 m0, s55, {base + e*1024}\ns_add_u32 s56, s57, {u[1]*1024 + e*24576}")
                    a(f"buffer_load_dwordx4 {vr(vW)}, {srd(R_W)}, s56 offen lds")
                    issued.append(u)
            else:
                base = self.slot_base(u)
                a(f"s_add_u32 s56, s53, s{60+u[2]}")
                for e in range(2):
                    a(f"s_add_u32 m0, s55, {base + e*1024}\ns_nop 0")
                    a(f"buffer_load_dwordx4 {vr(vR0+e)}, {srd(R_BRE if u[1]==0 else R_BIM)}, s56 offen lds")
                    issued.append(u)
        NST = len(self.stages)
        seq = []
        for s in range(NST):
            if s < 8: seq.append(("x", s))
            seq += self.stages[s]
        pos = 0
        def top_up(limit_units, consumed):
            nonlocal pos
            while pos < len(seq) and pos < limit_units:
                u = seq[pos]
                if u[0] != "x" and self.uidx[u] >= consumed + NS: break
                issue(u); pos += 1
        def end_of(s):
            n = 0
            for k in range(min(s, NST-1) + 1):
                n += len(self.stages[k]) + (1 if k < 8 else 0)
            return n
        W = 3 * self.look
        top_up(W, 0)
        self.load_nonce()
        self.stamp(0)
        consumed = 0
        for s in range(NST):
            need = set(self.stages[s])
            if s < 8: need.add(("x", s))
            for u in need: assert u in issued, (s, u)
            last = max(i for i, t in enumerate(issued) if t in need)
            if s == 14:
                assert pos == len(seq)
                L = self.lbl("nopoll")
                a(f"s_cmp_eq_u32 s{S_WAVE}, 4\ns_cbranch_scc0 {L}")
                self.poll(F_KV, "tb", "32", 4, 5, sleep=1)
                a.label(L)
                self.stamp(2)
                a("s_waitcnt vmcnt(0) lgkmcnt(0)")
            else:
                a(f"s_waitcnt vmcnt({len(issued) - 1 - last})")
            a("s_barrier")
            if s % 2 == 0: self.stamp(7 + s//2)
            if s >= 1: consumed += len(self.stages[s-1])
            lim = end_of(s) + W
            if s < 8: lim = min(lim, end_of(self.hold))
            top_up(lim, consumed)
            if s == 2:
                self.sentinel(8)
                issued.append(("s",))
            if s == 4:
                a("s_waitcnt lgkmcnt(0)")
                self.fix_nonce()
                self.att_addr(); self.att_preset()
            if s == 13: self.att_q()
        a("s_branch L_att_pre")

    def compute(self):
        a = self.a
        a.label("L_comp")
        self.role = "c"
        j, h, t1, t2, t3, row = 1, 2, 3, 4, 5, 6
        xa, wlo, whi, sto = 8, 12, 13, 14
        acc = [16, 32]
        P = [48, 96]
        pk = 144
        a(f"""v_and_b32 {vr(j)}, 31, v0
        v_lshrrev_b32 {vr(h)}, 5, v0
        s_lshr_b32 s51, s{S_WAVE}, 1
        s_and_b32 s52, s{S_WAVE}, 1""")
        self.tau(row, j, t1)
        self.rowfrag_addrs(xa, row, h, t1, t2, L_X)
        self.tr_addr(wlo, 0, "s51", 8, t1, t2, t3, 65536)
        a(f"v_add_u32 {vr(whi)}, 65536, {vr(wlo)}")
        a(f"""s_lshl_b32 s53, s{S_CG}, 2
        s_lshl_b32 s54, s51, 1
        s_add_u32 s53, s53, s54
        s_lshl_b32 s53, s53, 17
        s_lshl_b32 s54, s{S_TB}, 12
        s_add_u32 s53, s53, s54
        s_add_u32 s53, s53, {WS_KV}
        s_add_u32 s54, s53, 131072
        s_waitcnt lgkmcnt(0)""")
        self.load_nonce()
        def wref(base):
            if base < 131072: return wlo, base - 65536
            return whi, base - 131072
        a("s_cmp_eq_u32 s52, 0\ns_cbranch_scc0 L_compV")
        for m in (1, 2):
            if m == 2: a.label("L_compV")
            if m == 1:
                self.swap23(sto, j, t1)
                a(f"v_lshl_add_u32 {vr(sto)}, {vr(h)}, 5, {vr(sto)}\nv_lshlrev_b32 {vr(sto)}, 4, {vr(sto)}")
            else:
                a(f"""v_and_b32 {vr(sto)}, 15, {vr(j)}
                v_lshlrev_b32 {vr(sto)}, 4, {vr(sto)}
                v_lshl_add_u32 {vr(sto)}, {vr(h)}, 8, {vr(sto)}
                v_lshrrev_b32 {vr(t1)}, 4, {vr(j)}
                v_lshl_add_u32 {vr(sto)}, {vr(t1)}, 17, {vr(sto)}""")
            def reads(s):
                t = []
                b = P[s & 1]
                wr, wo_ = wref(self.slot_base(("W", m, s)))
                for ks in range(4):
                    t.append(f"ds_read_b128 {vr(b+12*ks,4)}, {vr(xa+ks)} offset:{s*8192}")
                    t.append(f"ds_read_b64_tr_b16 {vr(b+12*ks+8,2)}, {vr(wr)} offset:{wo_ + ks*2048}")
                    t.append(f"ds_read_b64_tr_b16 {vr(b+12*ks+10,2)}, {vr(wr)} offset:{wo_ + ks*2048 + 512}")
                    t.append(f"ds_read_b128 {vr(b+12*ks+4,4)}, {vr(xa+ks)} offset:{s*8192 + 4096}")
                return t
            def mf(s):
                t = []
                b = P[s & 1]
                for ks in range(4):
                    for tt in range(2):
                        X = vr(b+12*ks+4*tt, 4); Wf = vr(b+12*ks+8, 4)
                        C = "0" if (s == 0 and ks == 0) else vr(acc[tt], 16)
                        if m == 1: t.append(f"v_mfma_f32_32x32x16_bf16 {vr(acc[tt],16)}, {Wf}, {X}, {C}")
                        else:      t.append(f"v_mfma_f32_32x32x16_bf16 {vr(acc[tt],16)}, {X}, {Wf}, {C}")
                return t
            for s in range(8):
                a("s_barrier")
                if s == 0: self.stamp(0)
                if s == 7: self.stamp(7)
                rd = reads(s); mm = mf(s-1) if 0 < s < 7 else []
                for i in range(8):
                    a(rd[2*i]); a(rd[2*i+1])
                    if mm: a(mm[i])
                if s == 2: self.sentinel(144)
                if s < 6:
                    a("s_waitcnt lgkmcnt(0)")
                else:
                    mm = mf(s)
                    for ks in range(4):
                        a(f"s_waitcnt lgkmcnt({13-4*ks})"); a(mm[2*ks])
                        a(f"s_waitcnt lgkmcnt({12-4*ks})"); a(mm[2*ks+1])
            self.stamp(8)
            a("s_setprio 3\ns_nop 9")
            for tt in range(2):
                for g in range(2):
                    d = pk + 8*tt + 4*g
                    for i in range(4):
                        a(f"v_cvt_pk_bf16_f32 {vr(d+i)}, {vr(acc[tt]+8*g+2*i)}, {vr(acc[tt]+8*g+2*i+1)}")
                    if m == 1:
                        a(f"buffer_store_dwordx4 {vr(d,4)}, {vr(sto)}, {srd(R_WS)}, {'s53' if g==0 else 's54'} offen offset:{tt*2048} sc1")
                    else:
                        a(f"buffer_store_dwordx4 {vr(d,4)}, {vr(sto)}, {srd(R_WS)}, s53 offen offset:{tt*2048 + 1024 + g*512} sc1")
            if m == 1: a("s_branch L_compQ")
        a.label("L_compQ")
        self.stamp(1)
        a(f"s_setprio 0\ns_lshl_b32 s53, s52, 12")
        for ks in range(4): a(f"v_add_u32 {vr(xa+ks)}, s53, {vr(xa+ks)}")
        self.fix_nonce()
        QB = [48, 80]
        def qread(k, ks):
            b = QB[k & 1] + 8*ks
            wr, wo_ = wref(self.slot_base(("W", 0, k)))
            a(f"ds_read_b128 {vr(b,4)}, {vr(xa+ks)} offset:{k*8192}")
            a(f"ds_read_b64_tr_b16 {vr(b+4,2)}, {vr(wr)} offset:{wo_ + ks*2048}")
            a(f"ds_read_b64_tr_b16 {vr(b+6,2)}, {vr(wr)} offset:{wo_ + ks*2048 + 512}")
        def qmf(k, ks):
            b = QB[k & 1] + 8*ks
            C = "0" if (k == 0 and ks == 0) else vr(acc[0], 16)
            a(f"v_mfma_f32_32x32x16_bf16 {vr(acc[0],16)}, {vr(b+4,4)}, {vr(b,4)}, {C}")
        for s in range(8, 12):
            a("s_barrier")
            k = 2*(s-8)
            for ks in range(4): qread(k, ks)
            for ks in range(4):
                qread(k+1, ks)
                a("s_waitcnt lgkmcnt(12)"); qmf(k, ks)
            if s < 11:
                for ks in range(4):
                    a(f"s_waitcnt lgkmcnt({9-3*ks})"); qmf(k+1, ks)
            if s == self.pub:
                self.arrive_publish(C_O, 4, F_KV, t1, t2)
                self.stamp(2)
            if s == 10:
                self.att_addr(); self.att_preset()
        a("s_waitcnt lgkmcnt(0)\ns_barrier")
        for ks in range(4): qmf(7, ks)
        a(f"""s_mov_b32 s73, {f32bits(QSCALE)}
        s_lshl_b32 s74, s51, 12
        s_lshl_b32 s75, s52, 10
        s_add_u32 s74, s74, s75
        s_add_u32 s74, s74, {L_Q}
        v_lshlrev_b32 {vr(sto)}, 4, v0
        v_add_u32 {vr(sto)}, s74, {vr(sto)}
        s_nop 6""")
        for r in range(0, 16, 2): a(f"v_pk_mul_f32 {vr(acc[0]+r,2)}, {vr(acc[0]+r,2)}, s[72:73] op_sel:[0,1] op_sel_hi:[1,1]")
        for g in range(2):
            for i in range(4):
                a(f"v_cvt_pk_bf16_f32 {vr(32+4*g+i)}, {vr(acc[0]+8*g+2*i)}, {vr(acc[0]+8*g+2*i+1)}")
            a(f"ds_write_b128 {vr(sto)}, {vr(32+4*g,4)} offset:{g*2048}")
        a("s_waitcnt lgkmcnt(0)")
        self.stamp(3)
        a("s_barrier")
        self.att_q()
        a("s_waitcnt lgkmcnt(0)\ns_barrier")

    A_T = [162, 163, 2, 3]
    A_VK, A_VV, A_IDX, A_GQ, A_VL = 160, 161, 164, 1, 165
    A_Q = [8, 12]
    A_S = [16, 32]
    A_O = [112, 128]
    A_M = 48
    A_K = [80, 84, 88]
    A_V = [144, 152]
    def att_addr(self):
        t1 = self.A_T[0]
        vK, vV, vL = self.A_VK, self.A_VV, self.A_VL
        self.a(f"""v_lshlrev_b32 {vr(vK)}, 4, v0
        v_and_b32 {vr(vV)}, 15, v0
        v_lshlrev_b32 {vr(vV)}, 4, {vr(vV)}
        v_lshrrev_b32 {vr(t1)}, 5, v0
        v_lshl_add_u32 {vr(vV)}, {vr(t1)}, 8, {vr(vV)}
        s_mul_i32 s70, s{S_WAVE}, {VRS}
        s_add_u32 s70, s70, {L_VR}
        v_add_u32 {vr(vL)}, s70, {vr(vV)}""")
    def att_preset(self):
        a = self.a
        t1, t2 = self.A_T[:2]
        a(f"""v_and_b32 {vr(t1)}, 27, v0
        v_cmp_eq_u32 vcc, 16, {vr(t1)}
        v_mov_b32 {vr(t2)}, 0x3f803f80
        v_mov_b32 {vr(self.A_IDX)}, 0xdddddddd
        v_cndmask_b32 {vr(t2)}, 0, {vr(t2)}, vcc""")
        for r in range(32): a(f"v_mov_b32 {vr(self.A_O[0]+r)}, 0")
        for i in range(16): a(f"v_mov_b32 {vr(self.A_V[0]+i)}, {vr(t2)}")
    def ldK(self, st, adv=True):
        self.a(f"""s_add_u32 s56, s53, s54
        buffer_load_dwordx4 {vr(self.A_K[st],4)}, {vr(self.A_VK)}, {srd(R_WS)}, s56 offen sc1""")
        if adv: self.a("s_add_u32 s54, s54, 4096\ns_and_b32 s54, s54, 0x1ffff")
    def ldVreg(self, vs):
        self.a(f"""s_mov_b64 exec, s[58:59]
        buffer_load_dwordx4 {vr(self.A_V[vs],4)}, {vr(self.A_VV)}, {srd(R_WS)}, s56 offen offset:1024 sc1
        buffer_load_dwordx4 {vr(self.A_V[vs]+4,4)}, {vr(self.A_VV)}, {srd(R_WS)}, s56 offen offset:1536 sc1
        s_mov_b64 exec, -1""")
    def ldVdma(self, slot):
        self.a(f"""s_add_u32 m0, s70, {slot*1024 - 1024}
        s_nop 0
        buffer_load_dwordx4 {vr(self.A_VK)}, {srd(R_WS)}, s56 offen offset:1024 sc1 lds""")
    def att_q(self):
        a = self.a
        t1, t2, t3, t4 = self.A_T
        q, gq = self.A_Q, self.A_GQ
        a(f"""s_and_b32 s51, s{S_WAVE}, 3
        s_lshr_b32 s52, s{S_WAVE}, 2
        s_lshl_b32 s55, s51, 11
        s_add_u32 s55, s55, {L_Q}
        v_add_u32 {vr(t3)}, s55, {vr(self.A_VK)}
        ds_read_b128 {vr(q[0],4)}, {vr(t3)}
        ds_read_b128 {vr(q[1],4)}, {vr(t3)} offset:1024
        v_and_b32 {vr(t1)}, 31, v0""")
        self.tau(t4, t1, t2)
        a(f"""s_lshl_b32 s55, s52, 7
        s_add_u32 s55, s55, {L_G}
        v_lshlrev_b32 {vr(t4)}, 2, {vr(t4)}
        v_add_u32 {vr(t4)}, s55, {vr(t4)}
        ds_read_b32 {vr(gq)}, {vr(t4)}
        s_lshl_b32 s53, s{S_CG}, 2
        s_add_u32 s61, s53, s51
        s_lshl_b32 s53, s61, 17
        s_add_u32 s57, s53, {WS_KV}
        s_lshl_b32 s54, s52, 11
        s_add_u32 s53, s57, s54
        s_lshl_b32 s54, s{S_TB}, 1
        s_add_u32 s54, s54, s52
        s_lshl_b32 s54, s54, 5
        s_add_u32 s61, s61, s54
        s_lshl_b32 s61, s61, 10
        s_add_u32 s61, s61, {WS_O}
        s_lshl_b32 s54, s{S_TB}, 12
        s_mov_b32 s58, 0x0000ffff
        s_mov_b32 s59, 0x0000ffff""")
        for r in range(8, 16): a(f"v_mov_b32 {vr(self.A_S[1]+r)}, 0")

    def attention(self):
        a = self.a
        a.label("L_att_pre")
        self.role = "a"
        t1, t2, t3, t4 = self.A_T
        vK, vV, idx, gq, vL = self.A_VK, self.A_VV, self.A_IDX, self.A_GQ, self.A_VL
        q, S, O, K, V, M = self.A_Q, self.A_S, self.A_O, self.A_K, self.A_V, self.A_M
        a("s_add_u32 s55, s52, 1\ns_cmp_eq_u32 s52, 0\ns_setprio 2\ns_cbranch_scc0 L_noprio")
        a("s_setprio 1")
        a.label("L_noprio")
        self.ldK(0); self.ldVreg(0)
        self.ldK(1); self.ldVreg(1)
        self.ldK(2)
        a(f"v_sub_f32 {vr(gq)}, 1.0, {vr(gq)}")
        a("s_barrier")
        if self.stop == "A":
            a("s_endpgm")
            return
        self.ldVdma(2)
        a(f"""s_waitcnt vmcnt(5)
        v_mfma_f32_32x32x16_bf16 {vr(S[0],16)}, {vr(K[0],4)}, {vr(q[0],4)}, 0
        s_nop 12""")
        self.stamp(4)
        def ex(b, lo, hi):
            for r in range(lo, hi): a(f"v_exp_f32 {vr(S[b]+r)}, {vr(S[b]+r)}")
        def smf(o, v, b, half):
            a(f"v_smfmac_f32_32x32x32_bf16 {vr(O[o],16)}, {vr(v,4)}, {vr(S[b]+8*half,8)}, {vr(idx)}")
        p1, p2, p3 = 2, 7, 12
        def step(s, extra=None):
            load = s + 3 < 32
            last = s == 31
            vm = 4 if load else 2*(30 - s)
            Vc, Vp = V[s & 1], V[(s+1) & 1]
            ex(0, 0, p1)
            if s > 0: smf(1, Vp+4, 1, 1)
            ex(0, p1, p2)
            if s > 1: a("s_waitcnt lgkmcnt(0)")
            a(f"v_mfma_f32_32x32x16_bf16 {vr(S[1],16)}, {vr(K[s % 3],4)}, {vr(q[1],4)}, 0")
            ex(0, p2, p2+2)
            if load: self.ldK(s % 3)
            ex(0, p2+2, p3)
            smf(0, Vc, 0, 0)
            ex(0, p3, p3+2)
            if load: self.ldVdma(s % 3)
            ex(0, p3+2, 16)
            ex(1, 0, p1)
            smf(0, Vc+4, 0, 1)
            ex(1, p1, p2)
            if not last:
                a(f"s_waitcnt vmcnt({vm})")
                a(f"v_mfma_f32_32x32x16_bf16 {vr(S[0],16)}, {vr(K[(s+1) % 3],4)}, {vr(q[0],4)}, 0")
            ex(1, p2, p2+2)
            if not last and s > 0:
                a(f"""s_mov_b64 exec, s[58:59]
                ds_read_b128 {vr(Vp,4)}, {vr(vL)} offset:{((s+1) % 3)*1024}
                ds_read_b128 {vr(Vp+4,4)}, {vr(vL)} offset:{((s+1) % 3)*1024 + 512}
                s_mov_b64 exec, -1""")
            ex(1, p2+2, p3)
            smf(1, Vc, 1, 0)
            if extra: extra()
            ex(1, p3, 16)
        for s in range(5): step(s)
        a(f"s_mov_b32 s60, 4")
        a(".p2align 6")
        a.label("L_att_loop")
        def loop_tail():
            a(f"s_sub_u32 s60, s60, 1")
            a(f"s_cmp_eq_u32 s60, {self.prio_switch}")
            a(f"s_cbranch_scc0 L_keepprio\ns_setprio 1")
            a.label("L_keepprio")
            a("s_cmp_lg_u32 s60, 0")
        for s in range(5, 11): step(s, extra=loop_tail if s == 10 else None)
        a("s_cbranch_scc1 L_att_loop")
        for s in range(29, 32): step(s)
        a("s_nop 0")
        smf(1, V[1]+4, 1, 1)
        self.stamp(5)
        a(f"""v_add_u32 {vr(t1)}, s70, {vr(vK)}
        s_xor_b32 s56, s{S_WAVE}, 4
        s_mul_i32 s55, s56, {VRS}
        s_add_u32 s55, s55, {L_VR}
        s_nop 1
        v_add_u32 {vr(t2)}, s55, {vr(vK)}
        v_lshrrev_b32 {vr(t3)}, 2, {vr(vK)}
        v_subrev_u32 {vr(t3)}, {vr(vK)}, {vr(t3)}
        v_cvt_pk_bf16_f32 {vr(gq)}, {vr(gq)}, {vr(gq)}
        v_add_u32 {vr(t4)}, {vr(t1)}, {vr(t3)}
        v_and_b32 {vr(gq)}, 0xffff0000, {vr(gq)}
        s_lshl_b32 s55, s{S_WAVE}, 2
        s_add_u32 s55, s55, {L_CNT + C_PA}
        v_mov_b32 {vr(100)}, s55
        v_mov_b32 {vr(101)}, 1
        v_xor_b32 {vr(102)}, 16, {vr(100)}
        s_cmp_eq_u32 s52, 0
        s_cbranch_scc1 L_x0""")
        a(f"""ds_write_b128 {vr(t1)}, {vr(O[0],4)}
        ds_write_b128 {vr(t1)}, {vr(O[0]+4,4)} offset:1024
        ds_write_b32 {vr(t4)}, {vr(O[0]+8)} offset:2048""")
        for r in range(4): a(f"v_mov_b32 {vr(q[0]+r)}, {vr(q[1]+r)}")
        for r in range(9): a(f"v_mov_b32 {vr(O[0]+r)}, {vr(O[1]+r)}")
        a("s_branch L_x1")
        a.label("L_x0")
        a(f"""ds_write_b128 {vr(t1)}, {vr(O[1],4)}
        ds_write_b128 {vr(t1)}, {vr(O[1]+4,4)} offset:1024
        ds_write_b32 {vr(t4)}, {vr(O[1]+8)} offset:2048""")
        a.label("L_x1")
        a(f"""s_waitcnt lgkmcnt(0)
        ds_write_b32 {vr(100)}, {vr(101)}
        v_add_u32 {vr(t4)}, {vr(t2)}, {vr(t3)}""")
        self.lds_wait_ge(102, 1, 101, sleep=0)
        a(f"""ds_read_b128 {vr(S[0],4)}, {vr(t2)}
        ds_read_b128 {vr(S[0]+4,4)}, {vr(t2)} offset:1024
        ds_read_b32 {vr(S[0]+8)}, {vr(t4)} offset:2048
        s_mov_b32 s69, {f32bits(2.0**100)}
        s_mov_b32 s63, {f32bits(2.0**-60)}
        s_mov_b32 s68, {f32bits(2.0**60)}
        s_waitcnt lgkmcnt(0)
        v_add_f32 {vr(O[0]+8)}, {vr(O[0]+8)}, {vr(S[0]+8)}""")
        for r in range(0, 8, 2): a(f"v_pk_add_f32 {vr(O[0]+r,2)}, {vr(O[0]+r,2)}, {vr(S[0]+r,2)}")
        a(f"""v_cmp_ngt_f32 s[66:67], {vr(O[0]+8)}, s63
        v_cmp_nlt_f32 vcc, {vr(O[0]+8)}, s68
        v_add_f32 {vr(t1)}, abs({vr(O[0])}), abs({vr(O[0]+1)})""")
        for r in range(2, 8): a(f"v_add_f32 {vr(t1)}, {vr(t1)}, abs({vr(O[0]+r)})")
        a(f"""v_cmp_nlt_f32 s[64:65], {vr(t1)}, s69
        s_or_b64 vcc, vcc, s[66:67]
        s_or_b64 vcc, vcc, s[64:65]
        s_cbranch_vccnz L_slow""")
        a.label("L_norm")
        a(f"""v_rcp_f32 {vr(t1)}, {vr(O[0]+8)}
        s_nop 0
        v_mul_f32 {vr(100)}, {vr(t1)}, {vr(gq)}""")
        for r in range(0, 8, 2): a(f"v_pk_mul_f32 {vr(O[0]+r,2)}, {vr(O[0]+r,2)}, {vr(100,2)} op_sel:[0,0] op_sel_hi:[1,0]")
        for i in range(4): a(f"v_cvt_pk_bf16_f32 {vr(S[1]+i)}, {vr(O[0]+2*i)}, {vr(O[0]+2*i+1)}")
        if self.tag:
            for i in range(4): a(f"v_min_u32 {vr(S[1]+i)}, -2, {vr(S[1]+i)}")
        a(f"buffer_store_dwordx4 {vr(S[1],4)}, {vr(vK)}, {srd(R_WS)}, s61 offen sc1")
        if self.tag:
            self.lds_signal(L_CNT + C_AD, t1, t2)
        else:
            self.arrive_publish(C_O, 8, F_O, t1, t2)
        self.stamp(6)
        self.stamp_flush()
        a("s_endpgm")
        a.label("L_slow")
        a(f"s_waitcnt vmcnt(0)\nv_mov_b32 {vr(t1)}, 0xff800000\ns_mov_b32 s54, 0")
        a.label("L_slow1")
        a(f"""s_add_u32 s56, s57, s54
        buffer_load_dwordx4 {vr(K[0],4)}, {vr(vK)}, {srd(R_WS)}, s56 offen sc1
        s_waitcnt vmcnt(0)
        v_mfma_f32_32x32x16_bf16 {vr(S[0],16)}, {vr(K[0],4)}, {vr(q[0],4)}, 0
        s_nop 15""")
        for r in range(0, 16, 2): a(f"v_max3_f32 {vr(t1)}, {vr(S[0]+r)}, {vr(S[0]+r+1)}, {vr(t1)}")
        a(f"""s_add_u32 s54, s54, 2048
        s_cmp_lt_u32 s54, 131072
        s_cbranch_scc1 L_slow1
        v_mov_b32 {vr(t2)}, {vr(t1)}
        s_nop 1
        v_permlane32_swap_b32 {vr(t1)}, {vr(t2)}
        s_nop 1
        v_max_f32 {vr(t1)}, {vr(t1)}, {vr(t2)}
        v_sub_f32 {vr(t1)}, 0, {vr(t1)}""")
        for r in range(16): a(f"v_mov_b32 {vr(M+r)}, {vr(t1)}\nv_mov_b32 {vr(O[0]+r)}, 0")
        a("s_mov_b32 s54, 0")
        a.label("L_slow2")
        a(f"""s_add_u32 s56, s57, s54
        buffer_load_dwordx4 {vr(K[0],4)}, {vr(vK)}, {srd(R_WS)}, s56 offen sc1
        s_mov_b64 exec, s[58:59]
        buffer_load_dwordx4 {vr(V[0],4)}, {vr(vV)}, {srd(R_WS)}, s56 offen offset:1024 sc1
        buffer_load_dwordx4 {vr(V[0]+4,4)}, {vr(vV)}, {srd(R_WS)}, s56 offen offset:1536 sc1
        s_mov_b64 exec, -1
        s_waitcnt vmcnt(0)
        v_mfma_f32_32x32x16_bf16 {vr(S[0],16)}, {vr(K[0],4)}, {vr(q[0],4)}, {vr(M,16)}
        s_nop 15""")
        ex(0, 0, 16)
        a("s_nop 1")
        smf(0, V[0], 0, 0)
        smf(0, V[0]+4, 0, 1)
        a(f"""s_add_u32 s54, s54, 2048
        s_cmp_lt_u32 s54, 131072
        s_cbranch_scc1 L_slow2
        s_nop 15
        s_branch L_norm""")

    def swave(self):
        a = self.a
        a.label("L_swave")
        self.role = "s"
        j, h, t1, t2, t3, t4, row = 1, 2, 3, 4, 5, 6, 7
        lr, li, cr, ci = 8, 9, 10, 11
        l16r, l16i, mur, mui, m2r, m2i, m4r, m4i = 12, 13, 14, 15, 16, 17, 18, 19
        xa, blo, bhi = 20, 24, 28
        dsk = 160
        acc = [32, 48]
        PM = 64
        bu = [80, 96]
        BUF = 112
        PB = [32, 112]
        AF, BF = 64, 128
        a(f"""s_and_b32 s51, s{S_WAVE}, 1
        s_bfe_u32 s52, s{S_WAVE}, 0x10001
        s_load_dwordx2 s[{R_C}:{R_C+1}], s[0:1], 40
        s_load_dwordx2 s[60:61], s[0:1], 48
        s_load_dwordx2 s[62:63], s[0:1], 8
        s_load_dwordx2 s[64:65], s[0:1], 16
        s_load_dwordx2 s[66:67], s[0:1], 56
        s_load_dwordx2 s[68:69], s[0:1], 64
        s_load_dwordx2 s[76:77], s[0:1], 96
        v_and_b32 {vr(j)}, 31, v0
        v_lshrrev_b32 {vr(h)}, 5, v0
        s_mov_b32 s{R_C+2}, {512*512*2}
        s_mov_b32 s{R_C+3}, 0x20000
        s_mov_b32 s{R_T+2}, 1024
        s_mov_b32 s{R_T+3}, 0x20000""")
        self.swap23(row, j, t1)
        a(f"""s_lshl_b32 s53, s{S_CG}, 6
        s_lshl_b32 s54, s52, 5
        s_add_u32 s53, s53, s54
        v_add_u32 {vr(t3)}, s53, {vr(row)}
        v_lshlrev_b32 {vr(t3)}, 1, {vr(t3)}
        v_add_u32 {vr(t4)}, s53, {vr(j)}
        v_lshlrev_b32 {vr(t4)}, 1, {vr(t4)}
        s_waitcnt lgkmcnt(0)
        s_cmp_eq_u32 s52, 0
        s_cselect_b32 s{R_C}, s{R_C}, s60
        s_cselect_b32 s{R_C+1}, s{R_C+1}, s61""")
        self.load_nonce()
        for (sp, dst, off) in ((62, lr, t3), (64, li, t3), (66, cr, t3), (68, dsk, t4)):
            a(f"""s_mov_b32 s{R_T}, s{sp}
            s_mov_b32 s{R_T+1}, s{sp+1}
            buffer_load_ushort {vr(dst)}, {vr(off)}, {srd(R_T)}, 0 offen""")
        a(f"""s_lshl_b32 s53, s{S_CG}, 1
        s_add_u32 s53, s53, s52
        s_lshl_b32 s53, s53, 13
        s_add_u32 s53, s53, {WS_E}
        s_add_u32 s{R_E}, s{R_WS}, s53
        s_addc_u32 s{R_E+1}, s{R_WS+1}, 0
        s_mov_b32 s{R_E+2}, 8192
        s_mov_b32 s{R_E+3}, 0x20000""")
        a(f"""v_lshlrev_b32 {vr(t1)}, 2, v0
        v_add_u32 {vr(t1)}, {L_CNT}, {vr(t1)}
        v_mov_b32 {vr(t2)}, 0
        ds_write_b32 {vr(t1)}, {vr(t2)}""")
        a(f"s_lshl_b32 s54, s52, 5\nv_add_u32 {vr(row)}, s54, {vr(row)}")
        self.rowfrag_addrs(blo, row, h, t1, t2, 65536)
        for ks in range(4): a(f"v_add_u32 {vr(bhi+ks)}, 65536, {vr(blo+ks)}")
        self.tau(row, j, t1)
        a(f"s_lshl_b32 s54, s51, 5\nv_add_u32 {vr(row)}, s54, {vr(row)}")
        self.rowfrag_addrs(xa, row, h, t1, t2, L_X)
        for r in range(16):
            a(f"v_mov_b32 {vr(bu[0]+r)}, 0\nv_mov_b32 {vr(bu[1]+r)}, 0")
        ga = 32
        gs = 40
        GX = 112
        a(f"""s_and_b32 s55, s{S_WAVE}, 3
        s_lshl_b32 s56, s55, 5
        v_lshrrev_b32 {vr(t1)}, 1, v0
        v_and_b32 {vr(t1)}, 7, {vr(t1)}
        v_lshlrev_b32 {vr(t1)}, 4, {vr(t1)}
        v_lshl_add_u32 {vr(t1)}, v0, 7, {vr(t1)}
        v_xor_b32 {vr(ga)}, s56, {vr(t1)}
        v_xor_b32 {vr(ga+1)}, 16, {vr(ga)}
        v_mov_b32 {vr(gs)}, 0
        v_mov_b32 {vr(gs+1)}, 0
        s_add_u32 s76, s76, s56
        s_addc_u32 s77, s77, 0
        s_waitcnt lgkmcnt(0)""")
        self.fix_nonce()
        def gw_load(sl):
            b = 60 + 8*(sl & 1)
            a(f"""s_add_u32 s58, s{S_ROT}, {sl}
            s_and_b32 s58, s58, 7
            s_lshl_b32 s58, s58, 7
            s_load_dwordx8 s[{b}:{b+7}], s[76:77], s58""")
        def g_read(sl):
            for c in range(2): a(f"ds_read_b128 {vr(GX+4*c,4)}, {vr(ga+c)} offset:{sl*8192}")
        def g_dot(sl):
            a("s_waitcnt lgkmcnt(0)")
            b = 60 + 8*(sl & 1)
            for i in range(8): a(f"v_dot2c_f32_bf16 {vr(gs + (i&1))}, s{b+i}, {vr(GX+i)}")
        gw_load(0)
        a("s_barrier")
        self.echo("B0")
        g_read(0); gw_load(1)
        a("s_waitcnt vmcnt(0)")
        a(f"""v_lshlrev_b32 {vr(lr)}, 16, {vr(lr)}
        v_lshlrev_b32 {vr(li)}, 16, {vr(li)}
        v_lshlrev_b32 {vr(cr)}, 16, {vr(cr)}
        v_lshlrev_b32 {vr(dsk)}, 16, {vr(dsk)}
        v_mul_f32 {vr(cr)}, {f32bits(LOG2E)}, {vr(cr)}
        v_exp_f32 {vr(cr)}, {vr(cr)}
        s_nop 0
        v_cvt_pk_bf16_f32 {vr(cr)}, {vr(cr)}, {vr(cr)}
        v_and_b32 {vr(cr)}, 0xffff0000, {vr(cr)}
        v_mul_f32 {vr(t1)}, {vr(cr)}, {vr(lr)}
        v_mul_f32 {vr(t2)}, {vr(cr)}, {vr(li)}
        v_mul_f32 {vr(t1)}, {f32bits(LOG2E)}, {vr(t1)}
        v_exp_f32 {vr(t1)}, {vr(t1)}
        v_mul_f32 {vr(t2)}, {f32bits(1.0/(2*math.pi))}, {vr(t2)}
        v_rndne_f32 {vr(t3)}, {vr(t2)}
        v_sub_f32 {vr(t2)}, {vr(t2)}, {vr(t3)}
        v_cos_f32 {vr(t3)}, {vr(t2)}
        v_sin_f32 {vr(t4)}, {vr(t2)}
        v_mul_f32 {vr(mur)}, {vr(lr)}, {vr(lr)}
        v_fmac_f32 {vr(mur)}, {vr(li)}, {vr(li)}
        v_rcp_f32 {vr(mur)}, {vr(mur)}
        v_mul_f32 {vr(t3)}, {vr(t1)}, {vr(t3)}
        v_mul_f32 {vr(t4)}, {vr(t1)}, {vr(t4)}
        v_add_f32 {vr(mur)}, {vr(mur)}, {vr(mur)}
        v_add_f32 {vr(t1)}, -1.0, {vr(t3)}
        v_mul_f32 {vr(cr)}, {vr(t1)}, {vr(lr)}
        v_fmac_f32 {vr(cr)}, {vr(t4)}, {vr(li)}
        v_mul_f32 {vr(ci)}, {vr(t4)}, {vr(lr)}
        v_fma_f32 {vr(ci)}, -{vr(t1)}, {vr(li)}, {vr(ci)}
        v_mul_f32 {vr(cr)}, {vr(cr)}, {vr(mur)}
        v_mul_f32 {vr(ci)}, {vr(ci)}, {vr(mur)}
        v_mov_b32 {vr(lr)}, {vr(t3)}
        v_mov_b32 {vr(li)}, {vr(t4)}""")
        def csq(dr, di, sr, si):
            a(f"""v_mul_f32 {vr(t1)}, {vr(si)}, {vr(si)}
            v_mul_f32 {vr(t2)}, {vr(sr)}, {vr(si)}
            v_fma_f32 {vr(dr)}, {vr(sr)}, {vr(sr)}, -{vr(t1)}
            v_add_f32 {vr(di)}, {vr(t2)}, {vr(t2)}""")
        g_dot(0)
        for sl in range(1, 8):
            a("s_barrier")
            g_read(sl)
            if sl == 1:
                csq(l16r, l16i, lr, li)
                for _ in range(3): csq(l16r, l16i, l16r, l16i)
            if sl == 2:
                csq(mur, mui, l16r, l16i)
                csq(m2r, m2i, mur, mui)
                csq(m4r, m4i, m2r, m2i)
            g_dot(sl)
            if sl < 7: gw_load(sl + 1)
        a(f"""s_lshl_b32 s55, s55, 8
        s_add_u32 s55, s55, {L_GW}
        v_lshlrev_b32 {vr(t1)}, 2, v0
        v_add_u32 {vr(t2)}, s55, {vr(t1)}
        s_nop 1
        v_add_f32 {vr(gs)}, {vr(gs)}, {vr(gs+1)}
        ds_write_b32 {vr(t2)}, {vr(gs)}
        v_add_u32 {vr(161)}, {L_GW}, {vr(t1)}
        s_waitcnt lgkmcnt(0)""")
        def gate_final():
            a(f"""ds_read_b32 {vr(t1)}, v161
            ds_read_b32 {vr(t2)}, v161 offset:256
            ds_read_b32 {vr(t3)}, v161 offset:512
            ds_read_b32 {vr(t4)}, v161 offset:768
            s_waitcnt lgkmcnt(0)
            v_add_f32 {vr(t1)}, {vr(t1)}, {vr(t2)}
            v_add_f32 {vr(t3)}, {vr(t3)}, {vr(t4)}
            v_add_f32 {vr(t1)}, {vr(t1)}, {vr(t3)}
            v_cvt_pk_bf16_f32 {vr(t1)}, {vr(t1)}, {vr(t1)}
            v_and_b32 {vr(t1)}, 0xffff0000, {vr(t1)}
            v_mul_f32 {vr(t1)}, {f32bits(-LOG2E)}, {vr(t1)}
            v_exp_f32 {vr(t1)}, {vr(t1)}
            s_nop 0
            v_add_f32 {vr(t1)}, 1.0, {vr(t1)}
            v_rcp_f32 {vr(t1)}, {vr(t1)}
            s_nop 0
            v_cvt_pk_bf16_f32 {vr(t1)}, {vr(t1)}, {vr(t1)}
            v_and_b32 {vr(t1)}, 0xffff0000, {vr(t1)}
            ds_write_b32 v161, {vr(t1)} offset:{L_G - L_GW}""")
        def bref(base, ks):
            if base < 131072: return blo + ks, base - 65536
            return bhi + ks, base - 131072
        def breads(k):
            t = []
            b = PB[k & 1]
            for ks in range(4):
                t.append(f"ds_read_b128 {vr(b+12*ks,4)}, {vr(xa+ks)} offset:{k*8192}")
                for p in range(2):
                    rr, oo = bref(self.slot_base(("B", p, k)), ks)
                    t.append(f"ds_read_b128 {vr(b+12*ks+4+4*p,4)}, {vr(rr)} offset:{oo}")
            return t
        def bmf(k):
            t = []
            b = PB[k & 1]
            for ks in range(4):
                for p in range(2):
                    t.append(f"v_mfma_f32_32x32x16_bf16 {vr(bu[p],16)}, {vr(b+12*ks,4)}, {vr(b+12*ks+4+4*p,4)}, {vr(bu[p],16)}")
            return t
        def bstage(k):
            rd = breads(k); mm = bmf(k-1) if k > 0 else []
            n = 0
            for i in range(12):
                a(rd[i])
                if mm and i % 3 != 0: a(mm[n]); n += 1
        a("s_barrier")
        self.echo("B8")
        gate_final()
        a("s_waitcnt lgkmcnt(0)")
        for k in range(3):
            a("s_barrier")
            bstage(k)
            a("s_waitcnt lgkmcnt(0)")
        for ks in ((3, 4), (5, 6), (7,)):
            a("s_barrier")
            for k in ks:
                bstage(k)
                if k < 7: a("s_waitcnt lgkmcnt(0)")
        a(f"""s_sub_u32 s53, s{S_CG}, s{S_ROT}
        s_and_b32 s53, s53, 7
        s_lshl_b32 s53, s53, 13
        s_lshl_b32 s54, s51, 12
        s_add_u32 s53, s53, s54
        s_lshl_b32 s54, s52, 6
        s_add_u32 s53, s53, s54
        v_lshlrev_b32 {vr(t1)}, 11, {vr(h)}
        v_lshrrev_b32 {vr(t2)}, 3, {vr(j)}
        v_lshl_add_u32 {vr(t1)}, {vr(t2)}, 4, {vr(t1)}
        v_and_b32 {vr(t2)}, 7, {vr(j)}
        v_lshl_add_u32 {vr(t1)}, {vr(t2)}, 1, {vr(t1)}
        v_add_u32 {vr(t1)}, s53, {vr(t1)}""")
        for r in range(16): a(f"v_mov_b32 {vr(acc[0]+r)}, 0")
        a("s_waitcnt lgkmcnt(0)")
        for x in bmf(7): a(x)
        for r in range(16):
            if r % 2 == 0: a(f"v_xor_b32 {vr(t2)}, {(r>>1)<<4}, {vr(t1)}")
            a(f"ds_read_u16_d16_hi {vr(acc[0]+r)}, {vr(t2)} offset:{r*128}")
        G = 48
        a(f"""s_lshl_b32 s53, s51, 7
        s_add_u32 s53, s53, {L_G}
        v_lshlrev_b32 {vr(t3)}, 6, {vr(h)}
        v_add_u32 {vr(t3)}, s53, {vr(t3)}""")
        for i in range(4): a(f"ds_read_b128 {vr(G+4*i,4)}, {vr(t3)} offset:{16*i}")
        a(f"""v_bfe_u32 {vr(t1)}, {vr(j)}, 2, 1
        v_xor_b32 {vr(t1)}, {vr(t1)}, {vr(h)}
        v_lshlrev_b32 {vr(t1)}, 3, {vr(t1)}
        v_bfe_u32 {vr(t2)}, {vr(j)}, 4, 1
        v_lshl_add_u32 {vr(t1)}, {vr(t2)}, 2, {vr(t1)}
        v_bfe_u32 {vr(t2)}, {vr(j)}, 3, 1
        v_lshl_add_u32 {vr(t1)}, {vr(t2)}, 1, {vr(t1)}
        v_bfe_u32 {vr(t2)}, {vr(j)}, 1, 1
        v_add_u32 {vr(t1)}, {vr(t1)}, {vr(t2)}
        v_and_b32 {vr(t2)}, 1, {vr(j)}
        v_lshlrev_b32 {vr(t2)}, 4, {vr(t2)}
        v_mov_b32 {vr(t3)}, 0x3f80
        v_lshlrev_b32 {vr(t2)}, {vr(t2)}, {vr(t3)}""")
        for i in range(8):
            a(f"v_cmp_eq_u32 s[{60+2*i}:{61+2*i}], {i}, {vr(t1)}")
        for i in range(8):
            a(f"v_cndmask_b32 {vr(PM+i)}, 0, {vr(t2)}, s[{60+2*i}:{61+2*i}]")
        AB = 112
        a("s_waitcnt lgkmcnt(0)")
        for r in range(0, 16, 2):
            a(f"""v_pk_mul_f32 {vr(acc[0]+r,2)}, {vr(acc[0]+r,2)}, {vr(dsk,2)} op_sel:[0,0] op_sel_hi:[1,0]
            v_pk_mul_f32 {vr(AB+r,2)}, {vr(G+r,2)}, {vr(cr,2)} op_sel:[0,0] op_sel_hi:[1,0]
            v_pk_mul_f32 {vr(AB+16+r,2)}, {vr(G+r,2)}, {vr(cr,2)} op_sel:[0,1] op_sel_hi:[1,1]
            v_pk_mul_f32 {vr(acc[0]+r,2)}, {vr(acc[0]+r,2)}, {vr(G+r,2)}""")
        a("s_barrier")
        self.echo("B16")
        if 'noS0' in self.exp:
            self.stamp_flush(); a("s_endpgm"); return
        a("s_setprio 3")
        if self.stop == "A":
            a(f"""s_lshl_b32 s53, s{S_WG}, 2
            s_and_b32 s54, s{S_WAVE}, 3
            s_add_u32 s53, s53, s54
            s_mul_i32 s53, s53, {64*4*40}
            s_add_u32 s53, s53, {WS_DBG}
            v_lshlrev_b32 {vr(t1)}, 2, v0
            s_nop 7""")
            regs = [bu[0]+r for r in range(16)] + [bu[1]+r for r in range(16)] + [lr, li, cr, ci, l16r, l16i, m2r, m2i]
            for i, rg in enumerate(regs):
                a(f"s_add_u32 s54, s53, {i*256}\nbuffer_store_dword {vr(rg)}, {vr(t1)}, {srd(R_WS)}, s54 offen")
            a(f"""s_lshl_b32 s53, s{S_WG}, 14
            s_add_u32 s53, s53, {WS_DBG + 0xC00000}
            v_lshlrev_b32 {vr(t1)}, 4, v0
            v_add_u32 {vr(t2)}, {L_Q}, {vr(t1)}""")
            for i in range(8):
                a(f"ds_read_b128 {vr(BUF,4)}, {vr(t2)} offset:{i*1024}\ns_waitcnt lgkmcnt(0)\ns_add_u32 s54, s53, {i*1024}\nbuffer_store_dwordx4 {vr(BUF,4)}, {vr(t1)}, {srd(R_WS)}, s54 offen\ns_waitcnt vmcnt(0)")
            a(f"""v_lshlrev_b32 {vr(t1)}, 2, v0
            v_add_u32 {vr(t2)}, {L_G}, {vr(t1)}
            ds_read_b32 {vr(BUF)}, {vr(t2)}
            s_waitcnt lgkmcnt(0)
            s_add_u32 s54, s53, 8192
            buffer_store_dword {vr(BUF)}, {vr(t1)}, {srd(R_WS)}, s54 offen
            s_endpgm""")
            return
        if 'noS' in self.exp:
            self.stamp_flush(); a("s_endpgm"); return
        self.stamp(11)
        er, ei, e0r, e0i = 72, 73, 74, 75
        a0r, a0i, a1r, a1i = 76, 77, 78, 79
        Er, Ei, Fr, Fi = 144, 145, 146, 147
        def step2(zr, zi, pr, pi_, br, bi, ar=None, ai=None):
            ar = lr if ar is None else ar; ai = li if ai is None else ai
            a(f"""v_fma_f32 {vr(zr)}, {vr(ar)}, {vr(pr)}, {vr(br)}
            v_fma_f32 {vr(zi)}, {vr(ar)}, {vr(pi_)}, {vr(bi)}
            v_fma_f32 {vr(zr)}, -{vr(ai)}, {vr(pi_)}, {vr(zr)}
            v_fma_f32 {vr(zi)}, {vr(ai)}, {vr(pr)}, {vr(zi)}""")
        vR0, vR1, vW = 162, 163, 164
        a(f"s_lshl_b32 s55, s51, 1")
        self.dma_offsets(vR0, vR1, vW, "s55", 1024, t1, t2, t4)
        a(f"""s_lshl_b32 s70, s{S_CG}, 16
        s_lshl_b32 s71, s52, 15
        s_lshl_b32 s58, s51, 12
        s_add_u32 s71, s71, s58""")
        def cburst(b):
            for kc in range(2*b, 2*b+2):
                a(f"""s_add_u32 s59, s{S_TB}, {kc}
                s_and_b32 s59, s59, 7
                s_and_b32 s60, s59, 4
                s_lshl_b32 s60, s60, 14
                s_add_u32 s60, s60, s71
                s_and_b32 s58, s59, 3
                s_lshl_b32 s58, s58, 13
                s_add_u32 s60, s60, s58
                s_lshl_b32 s59, s59, 7
                s_add_u32 s59, s59, s70""")
                for i in range(4):
                    a(f"s_add_u32 m0, s60, {L_C + i*1024}\ns_add_u32 s58, s59, {(i>>1)*16384}")
                    a(f"buffer_load_dwordx4 {vr(vR0 + (i&1))}, {srd(R_C)}, s58 offen lds")
        cur = (bu[0], bu[1]); bufs = [(er, ei), (e0r, e0i)]
        for r in range(1, 16):
            d = bufs[r & 1]
            step2(d[0], d[1], cur[0], cur[1], bu[0]+r, bu[1]+r)
            cur = d
        a(f"""v_mov_b32 {vr(a0r)}, {vr(cur[0])}
        v_mov_b32 {vr(a1r)}, {vr(cur[0])}
        v_mov_b32 {vr(a0i)}, {vr(cur[1])}
        v_mov_b32 {vr(a1i)}, {vr(cur[1])}
        s_lshl_b32 s54, s52, 8
        s_add_u32 s54, s54, {L_EX}
        v_permlane32_swap_b32 {vr(a0r)}, {vr(a1r)}
        v_permlane32_swap_b32 {vr(a0i)}, {vr(a1i)}
        v_lshlrev_b32 {vr(t3)}, 3, {vr(j)}
        v_add_u32 {vr(t4)}, s54, {vr(t3)}""")
        step2(Er, Ei, a0r, a0i, a1r, a1i, l16r, l16i)
        a(f"""s_lshl_b32 s53, s{S_TB}, 1
        s_add_u32 s53, s53, s51
        s_lshl_b32 s55, s52, 2
        s_add_u32 s55, s55, {L_CNT + C_EX}
        v_mov_b32 {vr(t1)}, s55
        s_cmp_eq_u32 s51, 0
        s_cbranch_scc0 L_e1
        v_mov_b32 {vr(t2)}, 1
        ds_write_b64 {vr(t4)}, {vr(Er,2)}
        s_waitcnt lgkmcnt(0)
        ds_write_b32 {vr(t1)}, {vr(t2)}
        s_branch L_e2""")
        a.label("L_e1")
        self.lds_wait_ge(t1, 1, t2, sleep=0)
        a(f"ds_read_b64 {vr(Fr,2)}, {vr(t4)}\ns_waitcnt lgkmcnt(0)")
        step2(er, ei, Fr, Fi, Er, Ei, mur, mui)
        a(f"""s_lshl_b32 s54, s{S_TB}, 8
        s_mov_b32 exec_hi, 0
        buffer_store_dwordx2 {vr(er,2)}, {vr(t3)}, {srd(R_E)}, s54 offen sc1
        s_mov_b64 exec, -1""")
        self.arrive_publish(C_E, 2, F_E, t1, t2)
        a.label("L_e2")
        a('s_setprio 0')
        for b in range(4): cburst(b)
        a('s_setprio 3')
        self.stamp(2)
        if 'stopC' in self.exp:
            self.stamp_flush(); a("s_waitcnt vmcnt(0)\ns_endpgm"); return
        a(f"s_cmp_eq_u32 s{S_TB}, 0\ns_cbranch_scc1 L_noe")
        self.poll(F_E, "tb", f"s{S_TB}", t1, t2, sleep=4)
        a.label("L_noe")
        self.stamp(3)
        LBR = [48 + 2*i for i in range(8)] + [148 + 2*i for i in range(6)]
        WL = 8
        a(f"""s_sub_u32 s54, s{S_TB}, 31
        s_lshl_b32 s54, s54, 8
        v_lshlrev_b32 {vr(t4)}, 8, {vr(h)}
        v_sub_u32 {vr(t4)}, {vr(t3)}, {vr(t4)}
        v_add_u32 {vr(t4)}, s54, {vr(t4)}""")
        def lbload(i):
            a(f"buffer_load_dwordx2 {vr(LBR[i % WL],2)}, {vr(t4)}, {srd(R_E)}, 0 offen sc1")
            if i < 15: a(f"v_add_u32 {vr(t4)}, 512, {vr(t4)}")
        for i in range(WL): lbload(i)
        a(f"v_mov_b32 {vr(er)}, 0\nv_mov_b32 {vr(ei)}, 0")
        for i in range(16):
            a(f"s_waitcnt vmcnt({min(WL-1, 15-i)})")
            a(f"""v_pk_fma_f32 {vr(e0r,2)}, {vr(m4r,2)}, {vr(er,2)}, {vr(LBR[i % WL],2)} op_sel:[0,0,0] op_sel_hi:[0,1,1]
            v_pk_fma_f32 {vr(er,2)}, {vr(m4r,2)}, {vr(er,2)}, {vr(e0r,2)} op_sel:[1,1,0] op_sel_hi:[1,0,1] neg_lo:[1,0,0]""")
            if i + WL < 16: lbload(i + WL)
        b0r, b0i, b1r, b1i = 148, 149, 150, 151
        a(f"""v_mov_b32 {vr(b0r)}, {vr(er)}
        v_mov_b32 {vr(b1r)}, {vr(er)}
        v_mov_b32 {vr(b0i)}, {vr(ei)}
        v_mov_b32 {vr(b1i)}, {vr(ei)}
        s_nop 1
        v_permlane32_swap_b32 {vr(b0r)}, {vr(b1r)}
        v_permlane32_swap_b32 {vr(b0i)}, {vr(b1i)}
        s_nop 1""")
        Hr, Hi, H1r, H1i = 152, 153, 154, 155
        step2(Hr, Hi, b1r, b1i, b0r, b0i, m2r, m2i)
        a(f"s_cmp_eq_u32 s51, 0\ns_cbranch_scc1 L_h0")
        step2(H1r, H1i, Hr, Hi, Fr, Fi, mur, mui)
        a(f"v_mov_b32 {vr(Hr)}, {vr(H1r)}\nv_mov_b32 {vr(Hi)}, {vr(H1i)}")
        a.label("L_h0")
        step2(H1r, H1i, Hr, Hi, a0r, a0i, l16r, l16i)
        a(f"""s_mov_b32 exec_lo, 0
        v_mov_b32 {vr(Hr)}, {vr(H1r)}
        v_mov_b32 {vr(Hi)}, {vr(H1i)}
        s_mov_b32 exec_lo, -1""")
        pr, pi_ = Hr, Hi
        for r in range(16):
            a(f"""v_fmac_f32 {vr(bu[0]+r)}, {vr(lr)}, {vr(pr)}
            v_fmac_f32 {vr(bu[1]+r)}, {vr(lr)}, {vr(pi_)}
            v_fma_f32 {vr(bu[0]+r)}, -{vr(li)}, {vr(pi_)}, {vr(bu[0]+r)}
            v_fmac_f32 {vr(bu[1]+r)}, {vr(li)}, {vr(pr)}""")
            pr, pi_ = bu[0]+r, bu[1]+r
        PKZ = 144
        for r in range(0, 16, 2):
            a(f"""v_pk_mul_f32 {vr(72,2)}, {vr(AB+r,2)}, {vr(bu[0]+r,2)}
            v_pk_mul_f32 {vr(74,2)}, {vr(AB+16+r,2)}, {vr(bu[0]+r,2)}
            v_pk_fma_f32 {vr(72,2)}, {vr(AB+16+r,2)}, {vr(bu[1]+r,2)}, {vr(72,2)} neg_lo:[1,0,0] neg_hi:[1,0,0]
            v_pk_fma_f32 {vr(74,2)}, {vr(AB+r,2)}, {vr(bu[1]+r,2)}, {vr(74,2)} neg_lo:[1,0,1] neg_hi:[1,0,1]
            v_cvt_pk_bf16_f32 {vr(PKZ+r//2)}, {vr(72)}, {vr(73)}
            v_cvt_pk_bf16_f32 {vr(PKZ+8+r//2)}, {vr(74)}, {vr(75)}""")
        a("s_nop 1")
        for p in range(2):
            a(f"v_mfma_f32_32x32x16_bf16 {vr(bu[p],16)}, {vr(PKZ+8*p,4)}, {vr(PM,4)}, 0")
            a(f"v_mfma_f32_32x32x16_bf16 {vr(bu[p],16)}, {vr(PKZ+8*p+4,4)}, {vr(PM+4,4)}, {vr(bu[p],16)}")
        for r in range(16): a(f"v_mov_b32 {vr(acc[1]+r)}, 0")
        a(f"""s_lshl_b32 s54, s53, 6
        s_lshl_b32 s55, s{S_CG}, 2
        s_add_u32 s54, s54, s55
        s_lshl_b32 s55, s52, 1
        s_add_u32 s54, s54, s55
        s_lshl_b32 s54, s54, 10
        s_add_u32 s54, s54, {WS_H}
        s_add_u32 s55, s54, 32768
        v_lshlrev_b32 {vr(t3)}, 4, v0""")
        for p in range(2):
            for g in range(2):
                d = PKZ + 8*p + 4*g
                for i in range(4):
                    a(f"v_cvt_pk_bf16_f32 {vr(d+i)}, {vr(bu[p]+8*g+2*i)}, {vr(bu[p]+8*g+2*i+1)}")
                a(f"buffer_store_dwordx4 {vr(d,4)}, {vr(t3)}, {srd(R_WS)}, {'s54' if p==0 else 's55'} offen offset:{g*1024} sc1")
        self.arrive_publish(C_H, 4, F_H, t1, t2)
        self.stamp(4)
        if self.stop == "H":
            self.stamp_flush(); a("s_endpgm"); return
        self.sbarrier(1, t1, t2)
        ca = blo
        a(f"s_lshl_b32 s55, s52, 15")
        self.rowfrag_addrs(ca, j, h, t1, t2, 0)
        a(f"s_lshl_b32 s56, s52, 12\ns_add_u32 s55, s55, s56")
        for ks in range(4):
            a(f"v_add_u32 {vr(ca+ks)}, s55, {vr(ca+ks)}\nv_xor_b32 {vr(bhi+ks)}, 4096, {vr(ca+ks)}")
        self.poll(F_H, "cg", "8", t1, t2, sleep=4)
        self.stamp(5)
        a(f"""s_lshl_b32 s54, s53, 1
        s_add_u32 s54, s54, s52
        s_lshl_b32 s54, s54, 15
        s_add_u32 s54, s54, {WS_H}""")
        def aload(i, slot):
            if i % 4 == 0 and i: a(f"s_add_u32 s54, s54, 4096")
            a(f"buffer_load_dwordx4 {vr(AF+4*slot,4)}, {vr(t3)}, {srd(R_WS)}, s54 offen offset:{(i%4)*1024} sc1")
        def cread(ks):
            b = BF + 8*(ks & 3)
            a(f"ds_read_b128 {vr(b,4)}, {vr(ca+(ks&3))} offset:{((ks>>2)&3)*8192}")
            a(f"ds_read_b128 {vr(b+4,4)}, {vr(bhi+(ks&3))} offset:{((ks>>2)&3)*8192}")
        WA = self.win
        a("s_setprio 0")
        for i in range(WA): aload(i, i)
        for ks in range(16):
            a(f"ds_read_b128 {vr(BF,4)}, {vr(ca+(ks&3))} offset:{(ks>>2)*8192}")
            a(f"s_waitcnt vmcnt({WA-1}) lgkmcnt(0)\ns_setprio 3")
            a(f"v_mfma_f32_32x32x16_bf16 {vr(acc[0],16)}, {vr(AF+4*ks,4)}, {vr(BF,4)}, {vr(acc[0],16)}")
            a(f"ds_read_b128 {vr(BF+4,4)}, {vr(bhi+(ks&3))} offset:{(ks>>2)*8192}")
            a(f"s_waitcnt lgkmcnt(0)")
            a(f"v_mfma_f32_32x32x16_bf16 {vr(acc[1],16)}, {vr(AF+4*ks,4)}, {vr(BF+4,4)}, {vr(acc[1],16)}")
            a("s_setprio 0")
            aload(ks + WA, (ks + WA) % 16)
        for i in range(16 + WA, 32):
            aload(i, i % 16)
        a("s_setprio 3")
        for ks in range(4):
            a(f"v_add_u32 {vr(ca+ks)}, 65536, {vr(ca+ks)}\nv_add_u32 {vr(bhi+ks)}, 65536, {vr(bhi+ks)}")
        self.stamp(6)
        if 'stopG' in self.exp:
            self.stamp_flush(); a("s_endpgm"); return
        self.sbarrier(2, t1, t2)
        vR0, vR1, vW = 160, 161, 162
        a(f"s_and_b32 s55, s{S_WAVE}, 3")
        self.dma_offsets(vR0, vR1, vW, "s55", 1024, t1, t2, t4)
        a(f"s_lshl_b32 s56, s{S_CG}, 7\ns_lshl_b32 s57, s55, 11\ns_setprio 0")
        for kc in range(8):
            a(f"""s_add_u32 s59, s{S_TB}, {kc}
            s_and_b32 s59, s59, 7
            s_lshl_b32 s60, s59, 13
            s_add_u32 s60, s60, s57
            s_lshl_b32 s59, s59, 16
            s_add_u32 s59, s59, s56""")
            for e in range(2):
                a(f"s_add_u32 m0, s60, {L_WO + e*1024}\ns_add_u32 s58, s59, {e*8192}")
                a(f"buffer_load_dwordx4 {vr(vW)}, {srd(R_WO)}, s58 offen lds")
        a("s_setprio 3")
        w0, w1 = xa, xa + 1
        self.tr_addr(w0, 0, "s52", 4, t1, t2, t4, L_WO)
        a(f"""s_lshl_b32 s55, s52, 15
        v_add_u32 {vr(w0)}, s55, {vr(w0)}
        v_xor_b32 {vr(w1)}, 64, {vr(w0)}
        s_waitcnt vmcnt(0)""")
        self.sbarrier(3, t1, t2)
        oa = xa + 2
        a(f"""s_lshl_b32 s55, s53, 16
        s_lshl_b32 s56, s{S_CG}, 8
        s_add_u32 s55, s55, s56
        s_lshl_b32 s56, s52, 7
        s_add_u32 s55, s55, s56
        v_lshlrev_b32 {vr(oa)}, 15, {vr(h)}
        v_lshl_add_u32 {vr(oa)}, {vr(j)}, 2, {vr(oa)}
        v_add_u32 {vr(oa)}, s55, {vr(oa)}
        s_lshl_b32 s54, s53, 1
        s_add_u32 s54, s54, s52
        s_lshl_b32 s54, s54, 14
        s_add_u32 s54, s54, {WS_O}""")
        def wread(hd):
            b = BF + 8*(hd & 3)
            for n, w in enumerate((w0, w1)):
                for t in range(2):
                    a(f"ds_read_b64_tr_b16 {vr(b+4*n+2*t,2)}, {vr(w)} offset:{(16*hd + 8*t)*128}")
        cread(16); cread(17); cread(18)
        self.stamp(7)
        if 'stopW' in self.exp:
            self.stamp_flush(); a("s_endpgm"); return
        def omf(hd):
            if hd + 3 < 16: wread(hd + 3)
            nl = min(3, 15 - hd) * 4
            a(f"s_waitcnt lgkmcnt({nl})")
            b = BF + 8*(hd & 3)
            a(f"v_mfma_f32_32x32x16_bf16 {vr(acc[1],16)}, {vr(AF+4*hd,4)}, {vr(b+4,4)}, {vr(acc[1],16)}")
            a(f"v_mfma_f32_32x32x16_bf16 {vr(acc[0],16)}, {vr(AF+4*hd,4)}, {vr(b,4)}, {vr(acc[0],16)}")
        a(f"v_mov_b32 {vr(t1)}, {L_CNT + C_AD}")
        self.lds_wait_ge(t1, 8, t2)
        self.stamp(8)
        self.echo("O")
        a("s_mov_b32 s62, s54\ns_mov_b32 s49, 0")
        for ks in range(16, 32):
            if ks + 3 < 32: cread(ks + 3)
            else: wread(ks + 3 - 32)
            nl = {29: 8, 30: 10, 31: 12}.get(ks, 6)
            a(f"s_waitcnt lgkmcnt({nl})")
            b = BF + 8*(ks & 3)
            a(f"v_mfma_f32_32x32x16_bf16 {vr(acc[0],16)}, {vr(AF+4*(ks-16),4)}, {vr(b,4)}, {vr(acc[0],16)}")
            a(f"v_mfma_f32_32x32x16_bf16 {vr(acc[1],16)}, {vr(AF+4*(ks-16),4)}, {vr(b+4,4)}, {vr(acc[1],16)}")
            aload(ks - 16, ks - 16)
        a("s_branch L_ochk")
        a.label("L_oret")
        a("s_mov_b32 s54, s62")
        for i in range(16): aload(i, i)
        a.label("L_ochk")
        a(f"v_mov_b32 {vr(t1)}, 0\ns_add_u32 s49, s49, 1")
        for i in range(16):
            a(f"""s_waitcnt vmcnt({15-i})
            v_max3_u32 {vr(t1)}, {vr(AF+4*i)}, {vr(AF+4*i+1)}, {vr(t1)}
            v_max3_u32 {vr(t1)}, {vr(AF+4*i+2)}, {vr(AF+4*i+3)}, {vr(t1)}""")
        a(f"""v_cmp_eq_u32 vcc, -1, {vr(t1)}
        s_cmp_gt_u32 s49, {SPIN_MAX}
        s_cbranch_scc1 L_ogo
        s_cbranch_vccnz L_oret""")
        a.label("L_ogo")
        self.stamp(12)
        if self.stamps: a("v_writelane_b32 v167, s49, 31")
        for hd in range(16): omf(hd)
        a(f"""s_and_b32 s55, s{S_WAVE}, 3
        s_lshl_b32 s56, s55, 12
        s_add_u32 s56, s56, {L_FX}
        v_add_u32 {vr(t1)}, s56, {vr(t3)}
        v_xor_b32 {vr(t2)}, 8192, {vr(t1)}
        s_lshl_b32 s56, s55, 2
        s_add_u32 s56, s56, {L_CNT + C_PS}
        v_mov_b32 {vr(t4)}, s56
        v_mov_b32 {vr(row)}, 1
        s_nop 7""")
        for i in range(4): a(f"ds_write_b128 {vr(t1)}, {vr(acc[1]+4*i,4)} offset:{i*1024}")
        a(f"""s_waitcnt lgkmcnt(0)
        ds_write_b32 {vr(t4)}, {vr(row)}
        v_xor_b32 {vr(t4)}, 8, {vr(t4)}""")
        self.lds_wait_ge(t4, 1, row, sleep=0)
        for i in range(4): a(f"ds_read_b128 {vr(AF+4*i,4)}, {vr(t2)} offset:{i*1024}")
        for r in range(16):
            if r % 4 == 0: a(f"s_waitcnt lgkmcnt({3 - r//4})")
            a(f"v_add_f32 {vr(acc[0]+r)}, {vr(acc[0]+r)}, {vr(AF+r)}")
            if r % 2 == 0 and r: a(f"v_add_u32 {vr(oa)}, 4096, {vr(oa)}")
            a(f"buffer_store_dword {vr(acc[0]+r)}, {vr(oa)}, {srd(R_OUT)}, 0 offen offset:{(r&1)*2048}{' sc1' if 'outsc1' in self.exp else ''}{' nt' if 'outnt' in self.exp else ''}")
        self.stamp(9)
        self.stamp_flush()
        self.echo("end")
        self.echo_end()
        a(f"""s_or_b32 s55, s{S_TB}, s{S_CG}
        s_sub_u32 s56, s{S_WAVE}, 8
        s_or_b32 s55, s55, s56
        s_cmp_eq_u32 s55, 0
        s_cbranch_scc0 L_exit
        v_mov_b32 {vr(t1)}, 0
        v_mov_b32 {vr(t2)}, s{S_NONCE}
        s_mov_b64 exec, 1
        buffer_store_dword {vr(t2)}, {vr(t1)}, {srd(R_WS)}, 0 offen""")

    def build(self):
        self.prologue()
        self.loader()
        self.compute()
        self.attention()
        self.swave()
        self.a.label("L_exit")
        self.a("s_endpgm")
        ref = open(f"cdna_kernels/{NAME}.s.ref").read().split("\n")
        pre = "\n".join(l for l in ref if l.startswith(";") and "@launch" not in l)
        return self.a.text(pre)

if __name__ == "__main__":
    import argparse
    p = argparse.ArgumentParser()
    p.add_argument("-o", default=f"cdna_kernels/{NAME}.s")
    p.add_argument("--stop", default=None)
    p.add_argument("--stamps", action="store_true")
    p.add_argument("--pub", type=int, default=8)
    p.add_argument("--map", type=int, default=1)
    p.add_argument("--prio", type=int, default=1)
    p.add_argument("--exp", default="")
    p.add_argument("--win", type=int, default=8)
    p.add_argument("--look", type=int, default=3)
    p.add_argument("--D", type=int, default=6)
    p.add_argument("--hold", type=int, default=20)
    o = p.parse_args()
    g = Gen(stop=o.stop, stamps=o.stamps, pub=o.pub, mapmode=o.map, prio_switch=o.prio, exp=o.exp, win=o.win, look=o.look, D=o.D, hold=o.hold)
    open(o.o, "w").write(g.build())
    print("wrote", o.o)
```
